```python
import torch

def _softmax(x, axis=-1):
    return torch.softmax(x, dim=axis)

def _gelu(x):
    return torch.nn.functional.gelu(x, approximate='tanh')

def _silu(x):
    return torch.nn.functional.silu(x)

def _sigmoid(x):
    return torch.sigmoid(x)

def _layernorm(x, axis=-1, eps=1e-05):
    m = x.mean(dim=axis, keepdim=True)
    v = x.var(dim=axis, keepdim=True, unbiased=False)
    return (x - m) / torch.sqrt(v + eps)

def _scatter_add(tgt, idx, src, axis=0):
    return tgt.clone().index_add_(axis, idx, src)

def _segment_sum(src, seg, n):
    out = torch.zeros((n,) + src.shape[1:], dtype=src.dtype)
    return out.index_add_(0, seg, src)

def _pad(x, pw):
    flat = tuple((v for pair in reversed(pw) for v in pair))
    return torch.nn.functional.pad(x, flat)
kernel_name = 'adaLN_cond__sliding_local_dilated__glu_gated_geglu__prompt'

def setup_inputs():

    _w = lambda a: (lambda t: t.to(torch.bfloat16) if t.is_floating_point() else t)(torch.as_tensor(a))

    def _A_setup():
        B, S, D = (1, 2048, 512)
        return {'x': _w((lambda *s: torch.randn(*s, dtype=torch.bfloat16) * 0.05)(B, S, D)), 'wqkv': _w((lambda *s: torch.randn(*s, dtype=torch.bfloat16) * 0.05)(D, 3 * D)), 'wo': _w((lambda *s: torch.randn(*s, dtype=torch.bfloat16) * 0.05)(D, D))}
    _A_in = _A_setup()

    def _B_setup():
        B, S, Dm, Df = (1, 2048, 512, 1792)
        return {'x': _w((lambda *s: torch.randn(*s, dtype=torch.bfloat16) * 0.05)(B, S, Dm)), 'w_gate': _w((lambda *s: torch.randn(*s, dtype=torch.bfloat16) * 0.8)(Dm, Df) * Dm ** (-0.5)), 'w_up': _w((lambda *s: torch.randn(*s, dtype=torch.bfloat16) * 0.8)(Dm, Df) * Dm ** (-0.5)), 'w_down': _w((lambda *s: torch.randn(*s, dtype=torch.bfloat16) * 0.8)(Df, Dm) * Df ** (-0.5))}
    _B_in = _B_setup()
    return {'A_x': _A_in['x'], 'A_wqkv': _A_in['wqkv'], 'A_wo': _A_in['wo'], 'B_x': _B_in['x'], 'B_w_gate': _B_in['w_gate'], 'B_w_up': _B_in['w_up'], 'B_w_down': _B_in['w_down'], 'c': _w((lambda *s: torch.randn(*s, dtype=torch.bfloat16) * 0.2)(1, 512) * 8.0), 'w_mod': _w((lambda *s: torch.randn(*s, dtype=torch.bfloat16) * 0.2)(512, 6 * 512) * 512 ** (-0.5) * 8.0)}

def reference(A_x, A_wqkv, A_wo, B_x, B_w_gate, B_w_up, B_w_down, c, w_mod):

    def _A_ref(x, wqkv, wo):
        B, S, D = x.shape
        H = 32
        Dh = D // H
        W, dil = (8, 2)
        qkv = (lambda x, *d: x.permute(*d))((x @ wqkv).reshape(B, S, 3, H, Dh), 2, 0, 3, 1, 4)
        q, k, v = (qkv[0], qkv[1], qkv[2])
        scale = Dh ** (-0.5)
        pos = torch.arange(S)
        off = torch.arange(W) * dil
        idx = pos[:, None] - off[None, :]
        mask = idx >= 0
        idx_c = torch.where(mask, idx, 0).reshape(-1)
        kg = k[:, :, idx_c, :].reshape(B, H, S, W, Dh)
        vg = v[:, :, idx_c, :].reshape(B, H, S, W, Dh)
        logits = torch.einsum('bhsd,bhswd->bhsw', q, kg) * scale
        logits = torch.where(mask[None, None, :, :], logits, -1000000000.0)
        attn = _softmax(logits, axis=-1)
        o = torch.einsum('bhsw,bhswd->bhsd', attn, vg)
        return (lambda x, *d: x.permute(*d))(o, 0, 2, 1, 3).reshape(B, S, D) @ wo

    def _B_ref(x, w_gate, w_up, w_down):
        g = torch.einsum('bsd,df->bsf', x, w_gate)
        u = torch.einsum('bsd,df->bsf', x, w_up)
        h = _gelu(g) * u
        return torch.einsum('bsf,fd->bsd', h, w_down)
    x = A_x
    mod = (_silu(c) @ w_mod).reshape(c.shape[0], 6, 1, -1)
    sa, ca, ga, sb, cb, gb = (mod[:, 0].clone(), mod[:, 1].clone(), mod[:, 2].clone(), mod[:, 3].clone(), mod[:, 4].clone(), mod[:, 5].clone())
    h = _layernorm(x, axis=-1) * (1 + ca) + sa
    x = x + ga * _A_ref(h, A_wqkv, A_wo)
    h = _layernorm(x, axis=-1) * (1 + cb) + sb
    x = x + gb * _B_ref(h, B_w_gate, B_w_up, B_w_down)
    return x
```

```python
import re

TRANS = ("v_exp_f32", "v_log_f32", "v_rcp_f32", "v_rsq_f32", "v_sqrt_f32", "v_sin_f32", "v_cos_f32")

REG_RE = re.compile(r"^(-|abs\()?\s*([vsa])(\d+|\[(\d+):(\d+)\])\)?$")


def parse_reg(tok):
    tok = tok.strip()
    if tok in ("vcc",):
        return ("s", 106, 107)
    if tok == "vcc_lo":
        return ("s", 106, 106)
    if tok == "vcc_hi":
        return ("s", 107, 107)
    if tok == "exec":
        return ("s", 126, 127)
    if tok == "m0":
        return ("s", 124, 124)
    m = REG_RE.match(tok)
    if not m:
        return None
    kind = m.group(2)
    if m.group(4) is not None:
        return (kind, int(m.group(4)), int(m.group(5)))
    return (kind, int(m.group(3)), int(m.group(3)))


def split_ops(s):
    out, cur, depth = [], "", 0
    for ch in s:
        if ch == "[":
            depth += 1
        elif ch == "]":
            depth -= 1
        if ch == "," and depth == 0:
            out.append(cur.strip())
            cur = ""
        else:
            cur += ch
    if cur.strip():
        out.append(cur.strip())
    return out


class Inst:
    __slots__ = ("text", "name", "cls", "vw", "vr", "sw", "sr", "mfma", "ws", "dual")

    def __init__(self):
        self.vw = []
        self.vr = []
        self.sw = []
        self.sr = []
        self.mfma = None


def overlap(a, b):
    return a[0] == b[0] and a[1] <= b[2] and b[1] <= a[2]


def any_overlap(A, B):
    for a in A:
        for b in B:
            if overlap(a, b):
                return True
    return False


def classify(text):
    t = text.split(";")[0].strip()
    ins = Inst()
    ins.text = text
    if not t or t.endswith(":") or t.startswith("."):
        ins.name = None
        ins.cls = "none"
        ins.ws = 0
        return ins
    parts = t.split(None, 1)
    name = parts[0]
    rest = parts[1] if len(parts) > 1 else ""
    ops = split_ops(rest)
    clean = []
    mods = []
    for o in ops:
        toks = o.split()
        if toks:
            clean.append(toks[0])
            mods += toks[1:]
    ins.name = name
    ins.ws = 1
    regs = [parse_reg(o) for o in clean]

    def W(r):
        if r is None:
            return
        (ins.vw if r[0] in "va" else ins.sw).append(r)

    def R(r):
        if r is None:
            return
        (ins.vr if r[0] in "va" else ins.sr).append(r)

    if name == "s_nop":
        ins.cls = "nop"
        ins.ws = int(clean[0], 0) + 1
    elif name.startswith("v_mfma"):
        ins.cls = "mfma"
        W(regs[0])
        for r in regs[1:]:
            R(r)
        passes = 8 if "32x32" in name else 4
        ins.mfma = dict(d=regs[0], a=regs[1], b=regs[2], c=regs[3] if len(regs) > 3 else None, passes=passes)
    elif name.startswith("v_"):
        ins.cls = "valu"
        if name.startswith("v_permlane") and "swap" in name:
            for r in regs[:2]:
                W(r)
                R(r)
            ins.cls = "permswap"
        elif name.startswith("v_cmp"):
            W(regs[0])
            for r in regs[1:]:
                R(r)
        elif name.startswith("v_readfirstlane") or name.startswith("v_readlane"):
            W(regs[0])
            for r in regs[1:]:
                R(r)
            ins.cls = "readlane"
        elif name.startswith("v_fmac") or name.startswith("v_mac"):
            W(regs[0])
            R(regs[0])
            for r in regs[1:]:
                R(r)
        elif name.startswith("v_add_co") or name.startswith("v_addc_co") or name.startswith("v_sub_co"):
            W(regs[0])
            W(regs[1])
            for r in regs[2:]:
                R(r)
        else:
            W(regs[0])
            for r in regs[1:]:
                R(r)
            if name.startswith("v_cndmask") and len(regs) == 3:
                R(("s", 106, 107))
        if any(name.startswith(x) for x in TRANS):
            ins.cls = "trans"
        if "_dpp" in name or any(m.startswith(("quad_perm", "row_")) for m in mods):
            ins.dual = "dpp"
    elif name.startswith("ds_"):
        ins.cls = "ds"
        if name.startswith("ds_read") or name.startswith("ds_bpermute") or name.startswith("ds_swizzle"):
            W(regs[0])
            for r in regs[1:]:
                R(r)
        else:
            for r in regs:
                R(r)
    elif name.startswith("buffer_") or name.startswith("global_"):
        ins.cls = "vmem"
        if "load" in name:
            if "lds" in mods:
                ins.cls = "vmem_lds"
                for r in regs:
                    R(r)
                R(("s", 124, 124))
            else:
                W(regs[0])
                for r in regs[1:]:
                    R(r)
        else:
            for r in regs:
                R(r)
            if name.endswith("x4") or name.endswith("x3"):
                ins.dual = "widestore"
    elif name.startswith("s_"):
        ins.cls = "salu"
        if name in ("s_waitcnt", "s_barrier", "s_endpgm", "s_branch", "s_setprio", "s_sleep") or name.startswith(
            "s_cbranch"
        ) or name.startswith("s_cmp"):
            for r in regs:
                R(r)
        elif name.startswith("s_load"):
            W(regs[0])
            for r in regs[1:]:
                R(r)
        else:
            W(regs[0])
            for r in regs[1:]:
                R(r)
            if "saveexec" in name:
                W(("s", 126, 127))
    else:
        raise ValueError("unknown instruction: " + text)
    if not hasattr(ins, "dual"):
        ins.dual = None
    return ins


def required_wait(prev, cur):
    need = 0
    pc, cc = prev.cls, cur.cls
    isvalu_p = pc in ("valu", "trans", "permswap", "readlane")
    isvalu_c = cc in ("valu", "trans", "permswap", "readlane")
    if isvalu_p and cc == "mfma" and any_overlap(prev.vw, cur.vr):
        need = max(need, 2)
    if pc == "mfma":
        P = prev.mfma["passes"]
        d = prev.mfma["d"]
        if cc == "mfma":
            c = cur.mfma["c"]
            if c is not None and overlap(d, c):
                if c == d and cur.mfma["passes"] == P:
                    pass
                else:
                    need = max(need, 6 if P == 4 else 10)
            if overlap(d, cur.mfma["a"]) or overlap(d, cur.mfma["b"]):
                need = max(need, 8 if P == 4 else 12)
        else:
            if any_overlap([d], cur.vr) or any_overlap([d], cur.vw):
                need = max(need, 8 if P == 4 else 12)
    if pc == "mfma" and isvalu_c:
        c = prev.mfma["c"]
        if c is not None and any_overlap([c], cur.vw):
            need = max(need, 3 if prev.mfma["passes"] == 4 else 7)
    if pc == "trans" and isvalu_c and cc != "trans" and any_overlap(prev.vw, cur.vr):
        need = max(need, 1)
    if isvalu_p and prev.sw:
        if isvalu_c and any_overlap(prev.sw, cur.sr):
            need = max(need, 4 if cc == "readlane" else 2)
        if cc in ("vmem", "vmem_lds") and any_overlap(prev.sw, cur.sr):
            need = max(need, 5)
    if isvalu_p and any_overlap(prev.vw, cur.vr):
        if cc == "readlane":
            need = max(need, 1)
        if cc == "permswap":
            need = max(need, 2)
        if cur.dual == "dpp":
            need = max(need, 2)
    if pc == "salu" and cc == "vmem_lds" and any_overlap(prev.sw, [("s", 124, 124)]):
        need = max(need, 1)
    if pc == "vmem" and prev.dual == "widestore":
        data = prev.vr[:1]
        if any_overlap(data, cur.vw):
            need = max(need, 2)
    return need


class Asm:
    def __init__(self):
        self.lines = []
        self.hist = []
        self.vmq = []
        self.lgq = []

    def raw(self, s):
        self.lines.append(s)

    def flush_hist(self):
        self.hist = []

    def __call__(self, text):
        ins = classify(text)
        if ins.cls != "none":
            need = 0
            dist = 0
            for prev in reversed(self.hist[-24:]):
                req = required_wait(prev, ins)
                if req > dist:
                    need = max(need, req - dist)
                dist += prev.ws
                if dist > 20:
                    break
            if need > 0:
                n = need
                while n > 0:
                    k = min(n, 16)
                    nop = classify("s_nop %d" % (k - 1))
                    self.lines.append("    s_nop %d" % (k - 1))
                    self.hist.append(nop)
                    n -= k
            self.hist.append(ins)
            if len(self.hist) > 64:
                self.hist = self.hist[-32:]
        self.lines.append("    " + text)

    def label(self, name):
        self.lines.append(name + ":")

    def comment(self, s):
        self.lines.append("    ; " + s)

    def vm(self, text, tag=None):
        self(text)
        self.vmq.append(tag)

    def wait_vm(self, tag=None, extra=""):
        if tag is None:
            n = 0
            self.vmq = []
        else:
            idx = [i for i, t in enumerate(self.vmq) if t == tag]
            if not idx:
                return
            last = idx[-1]
            n = len(self.vmq) - 1 - last
            self.vmq = self.vmq[last + 1 :]
        assert n <= 63
        self("s_waitcnt vmcnt(%d)%s" % (n, extra))

    def lg(self, text, tag=None):
        self(text)
        self.lgq.append(tag)
        assert len(self.lgq) <= 15, "too many outstanding lgkm ops"

    def wait_lg(self, tag=None):
        if tag is None:
            n = 0
            self.lgq = []
        else:
            idx = [i for i, t in enumerate(self.lgq) if t == tag]
            if not idx:
                return
            last = idx[-1]
            n = len(self.lgq) - 1 - last
            self.lgq = self.lgq[last + 1 :]
        self("s_waitcnt lgkmcnt(%d)" % n)

    def text(self):
        return "\n".join(self.lines) + "\n"
```

```python
WS_MOD = 0
WS_ST1 = 16384
WS_ST2 = 65536
WS_O = 1 << 20
WS_X1 = 4 << 20
WS_HH = 8 << 20

NEG_BIG = 0xCE6E6B28
LOG2E = 0x3FB8AA3B
SC_ATT = 0x3EB8AA3B


def srd(A, d, b, size, off=0):
    if off:
        A("s_add_u32 s%d, s%d, %d" % (d, b, off))
        A("s_addc_u32 s%d, s%d, 0" % (d + 1, b + 1))
    else:
        A("s_mov_b32 s%d, s%d" % (d, b))
        A("s_mov_b32 s%d, s%d" % (d + 1, b + 1))
    A("s_mov_b32 s%d, %d" % (d + 2, size))
    A("s_mov_b32 s%d, 0x20000" % (d + 3))


def red8(A, v, tmp):
    A("v_add_f32_dpp v%d, v%d, v%d quad_perm:[1,0,3,2] row_mask:0xf bank_mask:0xf" % (v, v, v))
    A("v_add_f32_dpp v%d, v%d, v%d quad_perm:[2,3,0,1] row_mask:0xf bank_mask:0xf" % (v, v, v))
    A("v_add_f32_dpp v%d, v%d, v%d row_half_mirror row_mask:0xf bank_mask:0xf" % (v, v, v))


def allreduce4g(A, op, v, tmp):
    A("v_mov_b32 v%d, v%d" % (tmp, v))
    A("v_permlane16_swap_b32 v%d, v%d" % (v, tmp))
    A("%s v%d, v%d, v%d" % (op, v, v, tmp))
    A("v_mov_b32 v%d, v%d" % (tmp, v))
    A("v_permlane32_swap_b32 v%d, v%d" % (v, tmp))
    A("%s v%d, v%d, v%d" % (op, v, v, tmp))
```

```python
from asmlib import Asm
from common import *


def gen_k0(A):
    A.raw(".p2align 8")
    A.raw("k0_kernel:")
    A.flush_hist()
    A("s_cmp_ge_u32 s2, 160")
    A("s_cbranch_scc1 k0_end")
    A("s_cmp_ge_u32 s2, 96")
    A("s_cbranch_scc1 k0_stats")
    A("s_load_dwordx4 s[4:7], s[0:1], 56")
    A("s_load_dwordx2 s[8:9], s[0:1], 88")
    A("v_and_b32 v1, 15, v0")
    A("v_lshrrev_b32 v2, 4, v0")
    A("v_mul_u32_u24 v3, 0x30000, v2")
    A("v_lshlrev_b32 v4, 2, v1")
    A("v_add_u32 v3, v3, v4")
    A("s_lshl_b32 s3, s2, 6")
    A("v_add_u32 v3, s3, v3")
    A("v_lshlrev_b32 v5, 2, v0")
    A("s_waitcnt lgkmcnt(0)")
    srd(A, 12, 4, 1024)
    srd(A, 16, 6, 3145728)
    srd(A, 20, 8, 12288, WS_MOD)
    A("buffer_load_dword v6, v5, s[12:15], 0 offen")
    for i in range(32):
        A("s_mov_b32 s24, %d" % (i * 6144))
        A("buffer_load_dword v%d, v3, s[16:19], s24 offen" % (32 + i))
    A("s_waitcnt vmcnt(32)")
    A("v_lshlrev_b32 v7, 16, v6")
    A("v_and_b32 v8, 0xffff0000, v6")
    for r in (7, 8):
        A("v_mul_f32 v9, 0xbfb8aa3b, v%d" % r)
        A("v_exp_f32 v9, v9")
        A("v_add_f32 v9, 1.0, v9")
        A("v_rcp_f32 v9, v9")
        A("v_mul_f32 v%d, v%d, v9" % (r, r))
    A("v_cvt_pk_bf16_f32 v9, v7, v8")
    A("v_lshlrev_b32 v10, 16, v9")
    A("v_and_b32 v11, 0xffff0000, v9")
    A("v_lshlrev_b32 v12, 3, v0")
    A("ds_write_b64 v12, v[10:11]")
    A("s_waitcnt lgkmcnt(0)")
    A("s_barrier")
    A("v_lshlrev_b32 v12, 7, v2")
    for j in range(8):
        A("ds_read_b128 v[%d:%d], v12 offset:%d" % (64 + 4 * j, 67 + 4 * j, j * 16))
    A("v_mov_b32 v18, 0")
    A("v_mov_b32 v19, 0")
    A("s_waitcnt vmcnt(0) lgkmcnt(0)")
    for i in range(32):
        A("v_lshlrev_b32 v15, 16, v%d" % (32 + i))
        A("v_and_b32 v16, 0xffff0000, v%d" % (32 + i))
        A("v_fmac_f32 v18, v%d, v15" % (64 + i))
        A("v_fmac_f32 v19, v%d, v16" % (64 + i))
    A("v_lshlrev_b32 v12, 4, v2")
    A("v_add_u32 v12, v12, v1")
    A("v_lshlrev_b32 v12, 3, v12")
    A("ds_write_b64 v12, v[18:19] offset:2048")
    A("s_waitcnt lgkmcnt(0)")
    A("s_barrier")
    A("v_cmp_gt_u32 vcc, 16, v0")
    A("s_and_saveexec_b64 s[26:27], vcc")
    A("s_cbranch_execz k0_end")
    A("v_lshlrev_b32 v12, 3, v0")
    for j in range(16):
        A("ds_read_b64 v[%d:%d], v12 offset:%d" % (32 + 2 * j, 33 + 2 * j, 2048 + j * 128))
    A("s_waitcnt lgkmcnt(0)")
    for j in range(1, 16):
        A("v_add_f32 v32, v32, v%d" % (32 + 2 * j))
        A("v_add_f32 v33, v33, v%d" % (33 + 2 * j))
    A("v_cvt_pk_bf16_f32 v9, v32, v33")
    A("v_lshlrev_b32 v10, 16, v9")
    A("v_and_b32 v11, 0xffff0000, v9")
    A("s_lshl_b32 s3, s2, 7")
    A("v_lshlrev_b32 v12, 3, v0")
    A("v_add_u32 v12, s3, v12")
    A("buffer_store_dwordx2 v[10:11], v12, s[20:23], 0 offen")
    A("s_branch k0_end")
    A.label("k0_stats")
    A.flush_hist()
    A("s_load_dwordx2 s[4:5], s[0:1], 0")
    A("s_load_dwordx2 s[8:9], s[0:1], 88")
    A("s_sub_u32 s3, s2, 96")
    A("s_lshl_b32 s3, s3, 5")
    A("v_lshrrev_b32 v1, 3, v0")
    A("v_add_u32 v1, s3, v1")
    A("v_and_b32 v2, 7, v0")
    A("v_lshlrev_b32 v3, 10, v1")
    A("v_lshlrev_b32 v4, 4, v2")
    A("v_add_u32 v3, v3, v4")
    A("s_waitcnt lgkmcnt(0)")
    srd(A, 12, 4, 2097152)
    srd(A, 20, 8, 16384, WS_ST1)
    for i in range(8):
        A("buffer_load_dwordx4 v[%d:%d], v3, s[12:15], 0 offen offset:%d" % (16 + 4 * i, 19 + 4 * i, i * 128))
    A("v_mov_b32 v5, 0")
    A("s_waitcnt vmcnt(0)")
    for r in range(16, 48):
        A("v_lshlrev_b32 v6, 16, v%d" % r)
        A("v_and_b32 v7, 0xffff0000, v%d" % r)
        A("v_add_f32 v5, v5, v6")
        A("v_add_f32 v5, v5, v7")
    red8(A, 5, 6)
    A("v_mul_f32 v5, 0x3b000000, v5")
    A("v_mov_b32 v8, 0")
    for r in range(16, 48):
        A("v_lshlrev_b32 v6, 16, v%d" % r)
        A("v_and_b32 v7, 0xffff0000, v%d" % r)
        A("v_sub_f32 v6, v6, v5")
        A("v_sub_f32 v7, v7, v5")
        A("v_fmac_f32 v8, v6, v6")
        A("v_fmac_f32 v8, v7, v7")
    red8(A, 8, 6)
    A("v_mul_f32 v8, 0x3b000000, v8")
    A("v_add_f32 v8, 0x3727c5ac, v8")
    A("v_rsq_f32 v6, v8")
    A("v_lshlrev_b32 v3, 3, v1")
    A("v_mov_b32 v4, v5")
    A("v_mov_b32 v5, v6")
    A("buffer_store_dwordx2 v[4:5], v3, s[20:23], 0 offen")
    A.label("k0_end")
    A("s_endpgm")
```

```python
from asmlib import Asm
from common import *

MODTAB = 0
HST = 4096
HSTAGE = 12800
WST = HST + 2 * HSTAGE
WSTAGE = 24576
LDS = WST + 3 * WSTAGE
VGPR = 216

XRAW = 16
MT = 28
LT = 44
FR = [64, 96]
ACCQ = 128
ACCK = 144
ACCV = 164
VXOFF = 184
VA = 187
VB = 190
VHW = 193
VMT = 194
VDMA = 195
VWR = 197
VHR = 200
VOO = 201
BIAS0 = 202
BIAS1 = 206
BIAS0F = 210


def accreg(seg, b):
    if seg == 0:
        return ACCQ + 4 * (b - 1)
    if seg == 1:
        return ACCK + 4 * b
    return ACCV + 4 * b


def gen_k1(A):
    A.raw(".p2align 8")
    A.raw("k1_kernel:")
    A.flush_hist()
    A("s_cmp_ge_u32 s2, 256")
    A("s_cbranch_scc1 k1_end")
    A("s_load_dwordx4 s[4:7], s[0:1], 0")
    A("s_load_dwordx2 s[8:9], s[0:1], 88")
    A("v_lshrrev_b32 v1, 6, v0")
    A("v_readfirstlane_b32 s32, v1")
    A("s_lshr_b32 s33, s2, 3")
    A("s_and_b32 s34, s2, 7")
    A("s_lshl_b32 s35, s33, 6")
    A("v_lshrrev_b32 v2, 3, v0")
    A("v_and_b32 v3, 7, v0")
    A("v_and_b32 v4, 63, v0")
    A("v_and_b32 v5, 15, v0")
    A("v_bfe_u32 v6, v0, 4, 2")
    A("s_waitcnt lgkmcnt(0)")
    srd(A, 12, 4, 2097152)
    srd(A, 16, 6, 1572864)
    srd(A, 20, 8, 16384, WS_ST1)
    srd(A, 24, 8, 12288, WS_MOD)
    srd(A, 28, 8, 2097152, WS_O)
    A("s_sub_u32 s48, s35, 16")
    for p in range(3):
        A("v_add_u32 v7, s48, v2")
        if p:
            A("v_add_u32 v7, %d, v7" % (32 * p))
        A("v_max_i32 v7, 0, v7")
        A("v_lshlrev_b32 v%d, 10, v7" % (VXOFF + p))
        A("v_lshl_add_u32 v%d, v3, 4, v%d" % (VXOFF + p, VXOFF + p))
        A("v_lshlrev_b32 v7, 3, v7")
        A.vm("buffer_load_dwordx2 v[%d:%d], v7, s[20:23], 0 offen" % (44 + 2 * p, 45 + 2 * p), "st")
    A("v_lshlrev_b32 v7, 3, v0")
    A.vm("buffer_load_dwordx2 v[50:51], v7, s[24:27], 0 offen", "mod")
    A.vm("buffer_load_dwordx2 v[52:53], v7, s[24:27], 0 offen offset:2048", "mod")
    for j in range(6):
        A("s_mul_i32 s49, s32, 6")
        A("s_add_u32 s49, s49, %d" % j)
        A("s_lshr_b32 s50, s49, 3")
        A("s_and_b32 s51, s49, 7")
        A("s_lshl_b32 s52, s50, 10")
        A("s_mul_i32 s53, s51, 24576")
        A("s_add_u32 s52, s52, s53")
        A("s_lshl_b32 s53, s34, 7")
        A("s_add_u32 s%d, s52, s53" % (36 + j))
        A("s_lshl_b32 s52, s50, 13")
        A("s_lshl_b32 s53, s51, 10")
        A("s_add_u32 s%d, s52, s53" % (42 + j))
    A("v_lshrrev_b32 v7, 3, v4")
    A("v_and_b32 v8, 7, v4")
    A("v_and_b32 v9, 2, v7")
    for par in range(2):
        if par:
            A("v_or_b32 v10, 4, v9")
        else:
            A("v_mov_b32 v10, v9")
        A("v_xor_b32 v10, v8, v10")
        A("v_lshlrev_b32 v10, 4, v10")
        A("v_mul_u32_u24 v11, 3072, v7")
        A("v_add_u32 v%d, v10, v11" % (VDMA + par))
    A("v_lshrrev_b32 v7, 2, v5")
    A("v_lshl_add_u32 v7, v6, 3, v7")
    A("v_lshlrev_b32 v7, 7, v7")
    A("v_bfe_u32 v8, v5, 3, 1")
    A("v_lshlrev_b32 v8, 1, v8")
    A("v_and_b32 v9, 1, v6")
    A("v_lshl_or_b32 v8, v9, 2, v8")
    A("v_bfe_u32 v9, v5, 1, 1")
    A("s_lshl_b32 s49, s32, 1")
    A("v_add_u32 v9, s49, v9")
    A("v_xor_b32 v8, v8, v9")
    A("v_lshl_add_u32 v7, v8, 4, v7")
    A("v_and_b32 v9, 1, v5")
    A("v_lshl_add_u32 v7, v9, 3, v7")
    for st in range(3):
        A("v_add_u32 v%d, %d, v7" % (VWR + st, WST + st * WSTAGE))
    A("v_mul_u32_u24 v7, 160, v5")
    A("v_lshl_add_u32 v7, v6, 4, v7")
    A("v_add_u32 v%d, %d, v7" % (VHR, HST))
    A("v_mul_u32_u24 v7, 160, v2")
    A("v_lshl_add_u32 v7, v3, 4, v7")
    A("v_add_u32 v%d, %d, v7" % (VHW, HST))
    A("v_lshlrev_b32 v%d, 5, v3" % VMT)
    for r in range(4):
        A("v_lshlrev_b32 v7, 2, v6")
        A("v_sub_u32 v7, v5, v7")
        A("v_add_u32 v8, %d, v7" % (16 - r))
        A("v_and_b32 v9, 1, v8")
        A("v_cmp_ge_i32 vcc, 14, v8")
        A("v_cmp_eq_u32 s[50:51], 0, v9")
        A("s_and_b64 vcc, vcc, s[50:51]")
        A("v_mov_b32 v9, 0x%x" % NEG_BIG)
        A("v_cndmask_b32 v%d, v9, 0, vcc" % (BIAS0 + r))
        A("v_subrev_u32 v8, %d, v7" % r)
        A("v_and_b32 v9, 1, v8")
        A("v_cmp_le_i32 vcc, 0, v8")
        A("v_cmp_eq_u32 s[50:51], 0, v9")
        A("s_and_b64 vcc, vcc, s[50:51]")
        A("v_mov_b32 v9, 0x%x" % NEG_BIG)
        A("v_cndmask_b32 v%d, v9, 0, vcc" % (BIAS1 + r))
    A("s_cmp_eq_u32 s33, 0")
    A("s_cselect_b32 s49, 0x%x, 0" % NEG_BIG)
    for r in range(4):
        A("v_add_f32 v%d, s49, v%d" % (BIAS0F + r, BIAS0 + r))
    A("v_lshlrev_b32 v7, 10, v5")
    A("v_lshl_add_u32 v%d, v6, 3, v7" % VOO)
    A("s_lshl_b32 s54, s34, 2")
    A("s_add_u32 s54, s54, s32")
    A("s_lshl_b32 s54, s54, 5")
    A("s_lshl_b32 s55, s35, 10")
    A("s_add_u32 s54, s54, s55")

    def dma_w(kc):
        st = kc % 3
        for j in range(6):
            A("s_add_u32 s49, s%d, %d" % (36 + j, kc * 196608))
            A("s_add_u32 m0, s%d, %d" % (42 + j, WST + st * WSTAGE))
            A.vm("buffer_load_dwordx4 v%d, s[16:19], s49 offen lds" % (VDMA + (j & 1)), "W%d" % kc)

    def xload(kc):
        for p in range(3):
            A.vm(
                "buffer_load_dwordx4 v[%d:%d], v%d, s[12:15], 0 offen offset:%d" % (XRAW + 4 * p, XRAW + 4 * p + 3, VXOFF + p, kc * 128),
                "x%d" % kc,
            )

    dma_w(0)
    dma_w(1)
    xload(0)
    A.wait_vm("mod")
    A("v_add_f32 v52, 1.0, v52")
    A("v_add_f32 v53, 1.0, v53")
    A("v_cvt_pk_bf16_f32 v54, v52, v53")
    A("v_lshlrev_b32 v52, 16, v54")
    A("v_and_b32 v53, 0xffff0000, v54")
    A("v_lshlrev_b32 v7, 3, v0")
    A("ds_write_b64 v7, v[52:53]")
    A("ds_write_b64 v7, v[50:51] offset:2048")
    for p in range(3):
        A("v_mov_b32 v%d, v%d" % (VA + p, 45 + 2 * p))
        A("v_mul_f32 v7, v%d, v%d" % (44 + 2 * p, 45 + 2 * p))
        A("v_sub_f32 v%d, 0, v7" % (VB + p))
    A("s_waitcnt lgkmcnt(0)")
    A("s_barrier")

    skipflag = {"n": 0}

    def ln_chunk(kc, interleave=None):
        sth = kc % 2
        A.lg("ds_read_b128 v[%d:%d], v%d offset:%d" % (MT, MT + 3, VMT, kc * 256), "mt")
        A.lg("ds_read_b128 v[%d:%d], v%d offset:%d" % (MT + 4, MT + 7, VMT, kc * 256 + 16), "mt")
        A.lg("ds_read_b128 v[%d:%d], v%d offset:%d" % (MT + 8, MT + 11, VMT, 2048 + kc * 256), "mt")
        A.lg("ds_read_b128 v[%d:%d], v%d offset:%d" % (MT + 12, MT + 15, VMT, 2048 + kc * 256 + 16), "mt")
        A.wait_vm("x%d" % kc)
        A.wait_lg("mt")
        for p in range(3):
            lab = None
            if p == 2:
                skipflag["n"] += 1
                lab = "k1_skip%d" % skipflag["n"]
                A("s_cmp_ge_u32 s32, 2")
                A("s_cbranch_scc1 %s" % lab)
            for d in range(4):
                r = XRAW + 4 * p + d
                A("v_lshlrev_b32 v%d, 16, v%d" % (LT + 2 * d, r))
                A("v_and_b32 v%d, 0xffff0000, v%d" % (LT + 2 * d + 1, r))
            for e in range(8):
                A("v_fma_f32 v%d, v%d, v%d, v%d" % (LT + e, LT + e, VA + p, VB + p))
            for e in range(8):
                A("v_fma_f32 v%d, v%d, v%d, v%d" % (LT + e, LT + e, MT + e, MT + 8 + e))
            for d in range(4):
                A("v_cvt_pk_bf16_f32 v%d, v%d, v%d" % (56 + d, LT + 2 * d, LT + 2 * d + 1))
            A.lg("ds_write_b128 v%d, v[56:59] offset:%d" % (VHW, sth * HSTAGE + p * 5120), "hw")
            if lab:
                A.label(lab)
                A.flush_hist()
                A("s_nop 4")
            if interleave:
                pass

    ln_chunk(0)
    xload(1)
    A.wait_vm("W0")
    A.wait_lg()
    A("s_barrier")

    def read_frags(kc, ss, fs):
        stw = kc % 3
        sth = kc % 2
        base = FR[fs]
        ops = []
        for b in range(5):
            ops.append("ds_read_b128 v[%d:%d], v%d offset:%d" % (base + 4 * b, base + 4 * b + 3, VHR, sth * HSTAGE + b * 2560 + ss * 64))
        for seg in range(3):
            for hf in range(2):
                ops.append(
                    "ds_read_b64_tr_b16 v[%d:%d], v%d offset:%d"
                    % (base + 20 + 4 * seg + 2 * hf, base + 20 + 4 * seg + 2 * hf + 1, VWR + stw, seg * 8192 + ss * 4096 + hf * 512)
                )
        return ops

    def mfmas(kc, ss, fs):
        base = FR[fs]
        out = []
        for seg in range(3):
            for b in range(5):
                if seg == 0 and b == 0:
                    continue
                acc = accreg(seg, b)
                hf = "v[%d:%d]" % (base + 4 * b, base + 4 * b + 3)
                wf = "v[%d:%d]" % (base + 20 + 4 * seg, base + 20 + 4 * seg + 3)
                c = "0" if (kc == 0 and ss == 0) else "v[%d:%d]" % (acc, acc + 3)
                if seg == 2:
                    out.append("v_mfma_f32_16x16x32_bf16 v[%d:%d], %s, %s, %s" % (acc, acc + 3, hf, wf, c))
                else:
                    out.append("v_mfma_f32_16x16x32_bf16 v[%d:%d], %s, %s, %s" % (acc, acc + 3, wf, hf, c))
        return out

    for kc in range(8):
        if kc + 2 < 8:
            dma_w(kc + 2)
        r0 = read_frags(kc, 0, 0)
        r1 = read_frags(kc, 1, 1)
        for o in r0:
            A.lg(o, "f0")
        for o in r1[:4]:
            A.lg(o, "f1")
        A.wait_lg("f0")
        m0 = mfmas(kc, 0, 0)
        rest = r1[4:]
        for idx, m in enumerate(m0):
            A(m)
            if idx < len(rest):
                A.lg(rest[idx], "f1")
        A.wait_lg("f1")
        m1 = mfmas(kc, 1, 1)
        for m in m1:
            A(m)
        if kc + 1 < 8:
            ln_chunk(kc + 1)
            if kc + 2 < 8:
                xload(kc + 2)
            A.wait_vm("W%d" % (kc + 1))
            A.wait_lg()
            A("s_barrier")

    QF, KF, VF = 64, 72, 82
    S0, S1, PF, OO = 92, 96, 100, 104
    T = 108
    M = 116
    TMP = 117
    SUM = 118
    for b in range(1, 5):
        a = accreg(0, b)
        A("v_cvt_pk_bf16_f32 v%d, v%d, v%d" % (QF + 2 * (b - 1), a, a + 1))
        A("v_cvt_pk_bf16_f32 v%d, v%d, v%d" % (QF + 2 * (b - 1) + 1, a + 2, a + 3))
    for b in range(5):
        a = accreg(1, b)
        A("v_cvt_pk_bf16_f32 v%d, v%d, v%d" % (KF + 2 * b, a, a + 1))
        A("v_cvt_pk_bf16_f32 v%d, v%d, v%d" % (KF + 2 * b + 1, a + 2, a + 3))
        a = accreg(2, b)
        A("v_cvt_pk_bf16_f32 v%d, v%d, v%d" % (VF + 2 * b, a, a + 1))
        A("v_cvt_pk_bf16_f32 v%d, v%d, v%d" % (VF + 2 * b + 1, a + 2, a + 3))
    A("s_mov_b32 s56, 0x%x" % SC_ATT)
    for b in range(1, 5):
        qf = "v[%d:%d]" % (QF + 2 * (b - 1), QF + 2 * (b - 1) + 1)
        A("v_mfma_f32_16x16x16_bf16 v[%d:%d], v[%d:%d], %s, 0" % (S0, S0 + 3, KF + 2 * (b - 1), KF + 2 * (b - 1) + 1, qf))
        A("v_mfma_f32_16x16x16_bf16 v[%d:%d], v[%d:%d], %s, 0" % (S1, S1 + 3, KF + 2 * b, KF + 2 * b + 1, qf))
        b0 = BIAS0F if b == 1 else BIAS0
        for r in range(4):
            A("v_fma_f32 v%d, v%d, s56, v%d" % (T + r, S0 + r, b0 + r))
        for r in range(4):
            A("v_fma_f32 v%d, v%d, s56, v%d" % (T + 4 + r, S1 + r, BIAS1 + r))
        A("v_max3_f32 v%d, v%d, v%d, v%d" % (M, T, T + 1, T + 2))
        A("v_max3_f32 v%d, v%d, v%d, v%d" % (M, M, T + 3, T + 4))
        A("v_max3_f32 v%d, v%d, v%d, v%d" % (M, M, T + 5, T + 6))
        A("v_max_f32 v%d, v%d, v%d" % (M, M, T + 7))
        allreduce4g(A, "v_max_f32", M, TMP)
        for j in range(8):
            A("v_sub_f32 v%d, v%d, v%d" % (T + j, T + j, M))
        for j in range(8):
            A("v_exp_f32 v%d, v%d" % (T + j, T + j))
        A("v_add_f32 v%d, v%d, v%d" % (SUM, T, T + 1))
        for j in range(2, 8):
            A("v_add_f32 v%d, v%d, v%d" % (SUM, SUM, T + j))
        allreduce4g(A, "v_add_f32", SUM, TMP)
        A("v_rcp_f32 v%d, v%d" % (SUM, SUM))
        for j in range(8):
            A("v_mul_f32 v%d, v%d, v%d" % (T + j, T + j, SUM))
        for d in range(4):
            A("v_cvt_pk_bf16_f32 v%d, v%d, v%d" % (PF + d, T + 2 * d, T + 2 * d + 1))
        A("v_mfma_f32_16x16x32_bf16 v[%d:%d], v[%d:%d], v[%d:%d], 0" % (OO, OO + 3, VF + 2 * (b - 1), VF + 2 * (b - 1) + 3, PF, PF + 3))
        A("v_cvt_pk_bf16_f32 v%d, v%d, v%d" % (PF, OO, OO + 1))
        A("v_cvt_pk_bf16_f32 v%d, v%d, v%d" % (PF + 1, OO + 2, OO + 3))
        A("s_add_u32 s49, s54, %d" % ((b - 1) * 16384))
        A("buffer_store_dwordx2 v[%d:%d], v%d, s[28:31], s49 offen" % (PF, PF + 1, VOO))
    A.label("k1_end")
    A("s_endpgm")
```

```python
from asmlib import Asm
from common import *

NST = 4
STAGE = 16384
LDS = NST * STAGE
VGPR = 128

FR = [16, 40]
ACC = 64
XV = 80
GV = 88
T = 96
VDMA = 112
VHR = 114
VWR = 116
VEO = 118
VST = 119


def gen_gemm(A, name, which):
    KS = 1024 if which == 2 else 3584
    nK = 8 if which == 2 else 28
    A.raw(".p2align 8")
    A.raw(name + ":")
    A.flush_hist()
    A("s_cmp_ge_u32 s2, 256")
    A("s_cbranch_scc1 %s_end" % name)
    A("s_load_dwordx2 s[8:9], s[0:1], 88")
    if which == 2:
        A("s_load_dwordx2 s[4:5], s[0:1], 16")
        A("s_load_dwordx2 s[6:7], s[0:1], 0")
    else:
        A("s_load_dwordx2 s[4:5], s[0:1], 48")
        A("s_load_dwordx2 s[6:7], s[0:1], 72")
    A("v_lshrrev_b32 v1, 6, v0")
    A("v_readfirstlane_b32 s32, v1")
    A("s_lshr_b32 s33, s2, 3")
    A("s_and_b32 s34, s2, 7")
    A("s_lshl_b32 s35, s33, 6")
    A("v_and_b32 v4, 63, v0")
    A("v_and_b32 v5, 15, v0")
    A("v_bfe_u32 v6, v0, 4, 2")
    A("s_waitcnt lgkmcnt(0)")
    if which == 2:
        srd(A, 16, 8, 2097152, WS_O)
        srd(A, 20, 4, 524288)
        srd(A, 24, 6, 2097152)
        srd(A, 28, 8, 2097152, WS_X1)
        srd(A, 36, 8, 262144, WS_ST2)
    else:
        srd(A, 16, 8, 7340032, WS_HH)
        srd(A, 20, 4, 1835008)
        srd(A, 24, 8, 2097152, WS_X1)
        srd(A, 28, 6, 2097152)
    srd(A, 40, 8, 12288, WS_MOD)
    A("s_cmp_lt_u32 s32, 2")
    A("s_cselect_b32 s12, s16, s20")
    A("s_cselect_b32 s13, s17, s21")
    A("s_cselect_b32 s14, s18, s22")
    A("s_mov_b32 s15, 0x20000")
    A("s_and_b32 s44, s32, 1")
    A("s_lshl_b32 s44, s44, 2")
    A("s_cmp_lt_u32 s32, 2")
    A("s_movk_i32 s45, 128")
    A("s_cselect_b32 s45, s45, 65536")
    A("s_cselect_b32 s46, 0, 8192")
    for j in range(4):
        A("s_add_u32 s47, s44, %d" % j)
        A("s_lshl_b32 s48, s47, 3")
        A("s_add_u32 s49, s48, s35")
        A("s_mul_i32 s49, s49, %d" % KS)
        A("s_lshl_b32 s50, s48, 10")
        A("s_lshl_b32 s51, s34, 7")
        A("s_add_u32 s50, s50, s51")
        A("s_cmp_lt_u32 s32, 2")
        A("s_cselect_b32 s%d, s49, s50" % (52 + j))
        A("s_lshl_b32 s47, s47, 10")
        A("s_add_u32 s%d, s47, s46" % (56 + j))
    A("v_lshrrev_b32 v7, 3, v4")
    A("v_and_b32 v8, 7, v4")
    for par in range(2):
        A("v_lshrrev_b32 v9, 4, v4")
        if par:
            A("v_add_u32 v9, 4, v9")
        A("v_and_b32 v9, 7, v9")
        A("v_xor_b32 v9, v8, v9")
        A("v_lshlrev_b32 v9, 4, v9")
        A("v_mul_u32_u24 v10, %d, v7" % KS)
        A("v_add_u32 v9, v9, v10")
        A("v_and_b32 v10, 2, v7")
        if par:
            A("v_or_b32 v10, 4, v10")
        A("v_xor_b32 v10, v8, v10")
        A("v_lshlrev_b32 v10, 4, v10")
        A("v_lshl_add_u32 v10, v7, 10, v10")
        A("s_cmp_lt_u32 s32, 2")
        A("s_cselect_b64 vcc, -1, 0")
        A("v_cndmask_b32 v%d, v10, v9, vcc" % (VDMA + par))
    A("s_lshr_b32 s47, s32, 1")
    A("s_lshl_b32 s47, s47, 5")
    A("v_add_u32 v7, s47, v5")
    A("v_lshlrev_b32 v7, 7, v7")
    A("v_lshrrev_b32 v8, 1, v5")
    A("v_and_b32 v8, 7, v8")
    A("v_xor_b32 v8, v6, v8")
    A("v_lshl_add_u32 v%d, v8, 4, v7" % VHR)
    A("v_xor_b32 v%d, 64, v%d" % (VHR + 1, VHR))
    A("v_lshrrev_b32 v7, 2, v5")
    A("v_lshl_add_u32 v7, v6, 3, v7")
    A("v_lshlrev_b32 v7, 7, v7")
    A("v_bfe_u32 v8, v5, 3, 1")
    A("v_lshlrev_b32 v8, 1, v8")
    A("v_and_b32 v9, 1, v6")
    A("v_lshl_or_b32 v8, v9, 2, v8")
    A("v_bfe_u32 v9, v5, 1, 1")
    A("s_and_b32 s47, s32, 1")
    A("s_lshl_b32 s47, s47, 2")
    A("v_add_u32 v9, s47, v9")
    A("v_xor_b32 v8, v8, v9")
    A("v_lshl_add_u32 v7, v8, 4, v7")
    A("v_and_b32 v9, 1, v5")
    A("v_lshl_add_u32 v7, v9, 3, v7")
    A("v_add_u32 v%d, 8192, v7" % VWR)
    A("v_xor_b32 v%d, 32, v%d" % (VWR + 1, VWR))
    A("s_lshr_b32 s47, s32, 1")
    A("s_lshl_b32 s47, s47, 5")
    A("s_add_u32 s47, s47, s35")
    A("v_add_u32 v7, s47, v5")
    A("v_lshlrev_b32 v8, 10, v7")
    A("s_and_b32 s48, s32, 1")
    A("s_lshl_b32 s48, s48, 5")
    A("s_lshl_b32 s49, s34, 6")
    A("s_add_u32 s48, s48, s49")
    A("v_lshl_add_u32 v9, v6, 2, s48")
    A("v_lshl_add_u32 v%d, v9, 1, v8" % VEO)
    gidx = 2 if which == 2 else 5
    A("s_lshl_b32 s48, s34, 1")
    A("s_and_b32 s49, s32, 1")
    A("s_add_u32 s48, s48, s49")
    A("v_lshl_add_u32 v10, v7, 4, s48")
    A("v_lshlrev_b32 v%d, 3, v10" % VST)
    return gidx


def gen_gemm_body(A, name, which):
    gidx = gen_gemm(A, name, which)
    nK = 8 if which == 2 else 28

    def dma(kc):
        st = kc % NST
        for j in range(4):
            A("s_add_u32 m0, s%d, %d" % (56 + j, st * STAGE))
            A.vm("buffer_load_dwordx4 v%d, s[12:15], s%d offen lds" % (VDMA + (j & 1), 52 + j), "c%d" % kc)
            A("s_add_u32 s%d, s%d, s45" % (52 + j, 52 + j))

    for kc in range(min(3, nK)):
        dma(kc)
    for kc in range(nK):
        st = kc % NST
        A.wait_vm("c%d" % kc)
        A("s_barrier")
        if kc + 3 < nK:
            dma(kc + 3)
        ops = [[], []]
        for ss in range(2):
            base = FR[ss]
            for rb in range(2):
                ops[ss].append("ds_read_b128 v[%d:%d], v%d offset:%d" % (base + 4 * rb, base + 4 * rb + 3, VHR + ss, st * STAGE + rb * 2048))
            for ctl in range(2):
                for hf in range(2):
                    ops[ss].append(
                        "ds_read_b64_tr_b16 v[%d:%d], v%d offset:%d"
                        % (base + 8 + 4 * ctl + 2 * hf, base + 8 + 4 * ctl + 2 * hf + 1, VWR + ctl, st * STAGE + ss * 4096 + hf * 512)
                    )
        for o in ops[0]:
            A.lg(o, "f0")
        for o in ops[1]:
            A.lg(o, "f1")
        for ss in range(2):
            A.wait_lg("f%d" % ss)
            base = FR[ss]
            for ctl in range(2):
                for rb in range(2):
                    acc = ACC + (ctl * 2 + rb) * 4
                    c = "0" if (kc == 0 and ss == 0) else "v[%d:%d]" % (acc, acc + 3)
                    A(
                        "v_mfma_f32_16x16x32_bf16 v[%d:%d], v[%d:%d], v[%d:%d], %s"
                        % (acc, acc + 3, base + 8 + 4 * ctl, base + 8 + 4 * ctl + 3, base + 4 * rb, base + 4 * rb + 3, c)
                    )
    return gidx


def epilogue(A, name, which, gidx):
    A.wait_vm()
    A("v_lshrrev_b32 v9, 1, v%d" % VEO)
    A("v_and_b32 v9, 511, v9")
    A("v_lshlrev_b32 v10, 2, v9")
    A("s_mov_b32 s47, %d" % (gidx * 2048))
    A.vm("buffer_load_dwordx4 v[%d:%d], v10, s[40:43], s47 offen" % (GV, GV + 3), "ep")
    A.vm("buffer_load_dwordx4 v[%d:%d], v10, s[40:43], s47 offen offset:64" % (GV + 4, GV + 7), "ep")
    for ctl in range(2):
        for rb in range(2):
            r = XV + 2 * (ctl * 2 + rb)
            A("s_mov_b32 s47, %d" % (rb * 16384))
            A.vm("buffer_load_dwordx2 v[%d:%d], v%d, s[24:27], s47 offen offset:%d" % (r, r + 1, VEO, ctl * 32), "ep")
    A.wait_vm("ep")
    for rb in range(2):
        for ctl in range(2):
            acc = ACC + (ctl * 2 + rb) * 4
            xr = XV + 2 * (ctl * 2 + rb)
            tb = T + ctl * 4
            A("v_lshlrev_b32 v%d, 16, v%d" % (tb, xr))
            A("v_and_b32 v%d, 0xffff0000, v%d" % (tb + 1, xr))
            A("v_lshlrev_b32 v%d, 16, v%d" % (tb + 2, xr + 1))
            A("v_and_b32 v%d, 0xffff0000, v%d" % (tb + 3, xr + 1))
            for r in range(4):
                A("v_fma_f32 v%d, v%d, v%d, v%d" % (tb + r, GV + 4 * ctl + r, acc + r, tb + r))
            A("v_cvt_pk_bf16_f32 v%d, v%d, v%d" % (xr, tb, tb + 1))
            A("v_cvt_pk_bf16_f32 v%d, v%d, v%d" % (xr + 1, tb + 2, tb + 3))
            A("s_mov_b32 s47, %d" % (rb * 16384))
            A("buffer_store_dwordx2 v[%d:%d], v%d, s[28:31], s47 offen offset:%d" % (xr, xr + 1, VEO, ctl * 32))
            if which == 2:
                A("v_lshlrev_b32 v%d, 16, v%d" % (tb, xr))
                A("v_and_b32 v%d, 0xffff0000, v%d" % (tb + 1, xr))
                A("v_lshlrev_b32 v%d, 16, v%d" % (tb + 2, xr + 1))
                A("v_and_b32 v%d, 0xffff0000, v%d" % (tb + 3, xr + 1))
        if which == 2:
            S, M2, TMP = T + 8, T + 9, T + 10
            A("v_add_f32 v%d, v%d, v%d" % (S, T, T + 1))
            for j in range(2, 8):
                A("v_add_f32 v%d, v%d, v%d" % (S, S, T + j))
            allreduce4g(A, "v_add_f32", S, TMP)
            A("v_mul_f32 v%d, 0x3d000000, v%d" % (S, S))
            A("v_mov_b32 v%d, 0" % M2)
            for j in range(8):
                A("v_sub_f32 v%d, v%d, v%d" % (TMP, T + j, S))
                A("v_fmac_f32 v%d, v%d, v%d" % (M2, TMP, TMP))
            allreduce4g(A, "v_add_f32", M2, TMP)
            A("v_mov_b32 v%d, v%d" % (T + 12, S))
            A("v_mov_b32 v%d, v%d" % (T + 13, M2))
            A("s_mov_b32 s47, %d" % (rb * 16 * 128))
            A("buffer_store_dwordx2 v[%d:%d], v%d, s[36:39], s47 offen" % (T + 12, T + 13, VST))
    A.label(name + "_end")
    A("s_endpgm")


def gen_k2(A):
    g = gen_gemm_body(A, "k2_kernel", 2)
    epilogue(A, "k2_kernel", 2, g)


def gen_k4(A):
    g = gen_gemm_body(A, "k4_kernel", 4)
    epilogue(A, "k4_kernel", 4, g)
```

```python
import struct
from asmlib import Asm
from common import *

MODTAB = 0
HST = 4096
HSTAGE = 20480
WST = HST + 2 * HSTAGE
WSTAGE = 32768
LDS = WST + 3 * WSTAGE
VGPR = 248


def f2h(x):
    return struct.unpack("<I", struct.pack("<f", x))[0]


C1 = f2h(-2.0 * 0.7978845608028654 * 1.4426950408889634)
C2 = f2h(-2.0 * 0.7978845608028654 * 1.4426950408889634 * 0.044715)

XRAW = 16
MT = 32
LT = 48
HF = [60, 68]
WR = 76
NR = 8
ACC = 108
VXOFF = 220
VA = 224
VB = 228
VHW = 232
VMT = 233
VDMA = 234
VWR = 236
VHR = 239
VEO = 240
VWT = 241


def acc(seg, ctl, rb):
    return ACC + ((seg * 7 + ctl) * 2 + rb) * 4


def gen_k3(A):
    A.raw(".p2align 8")
    A.raw("k3_kernel:")
    A.flush_hist()
    A("s_cmp_ge_u32 s2, 256")
    A("s_cbranch_scc1 k3_end")
    A("s_load_dwordx4 s[4:7], s[0:1], 32")
    A("s_load_dwordx2 s[8:9], s[0:1], 88")
    A("v_lshrrev_b32 v1, 6, v0")
    A("v_readfirstlane_b32 s32, v1")
    A("s_lshr_b32 s33, s2, 4")
    A("s_and_b32 s34, s2, 15")
    A("s_lshl_b32 s35, s33, 7")
    A("v_lshrrev_b32 v2, 3, v0")
    A("v_and_b32 v3, 7, v0")
    A("v_and_b32 v4, 63, v0")
    A("v_and_b32 v5, 15, v0")
    A("v_bfe_u32 v6, v0, 4, 2")
    A("s_waitcnt lgkmcnt(0)")
    srd(A, 12, 8, 2097152, WS_X1)
    srd(A, 16, 4, 1835008)
    srd(A, 40, 6, 1835008)
    srd(A, 20, 8, 262144, WS_ST2)
    srd(A, 24, 8, 12288, WS_MOD)
    srd(A, 28, 8, 7340032, WS_HH)
    A("s_cmp_lt_u32 s32, 2")
    A("s_cselect_b32 s16, s16, s40")
    A("s_cselect_b32 s17, s17, s41")
    for p in range(4):
        A("v_add_u32 v7, s35, v2")
        if p:
            A("v_add_u32 v7, %d, v7" % (32 * p))
        A("v_lshlrev_b32 v%d, 10, v7" % (VXOFF + p))
        A("v_lshl_add_u32 v%d, v3, 4, v%d" % (VXOFF + p, VXOFF + p))
        A("v_lshlrev_b32 v7, 7, v7")
        A("v_lshl_add_u32 v7, v3, 4, v7")
        A.vm("buffer_load_dwordx4 v[%d:%d], v7, s[20:23], 0 offen" % (XRAW + 4 * p, XRAW + 4 * p + 3), "st")
    A("v_lshlrev_b32 v7, 3, v0")
    A("s_movk_i32 s47, 6144")
    A.vm("buffer_load_dwordx2 v[50:51], v7, s[24:27], s47 offen", "mod")
    A.vm("buffer_load_dwordx2 v[52:53], v7, s[24:27], s47 offen offset:2048", "mod")
    A("s_mul_i32 s48, s34, 224")
    for j in range(8):
        A("s_and_b32 s49, s32, 1")
        A("s_lshl_b32 s49, s49, 3")
        A("s_add_u32 s49, s49, %d" % j)
        A("s_mul_i32 s50, s49, 14336")
        A("s_add_u32 s%d, s50, s48" % (56 + j))
        A("s_lshr_b32 s50, s32, 1")
        A("s_lshl_b32 s50, s50, 14")
        A("s_lshl_b32 s49, s49, 10")
        A("s_add_u32 s%d, s50, s49" % (64 + j))
    A("v_lshrrev_b32 v7, 4, v4")
    A("v_and_b32 v8, 15, v4")
    for par in range(2):
        if par:
            A("v_or_b32 v9, 4, v7")
        else:
            A("v_mov_b32 v9, v7")
        A("v_lshlrev_b32 v9, 1, v9")
        A("v_xor_b32 v9, v8, v9")
        A("v_lshlrev_b32 v9, 4, v9")
        A("v_mul_u32_u24 v10, 3584, v7")
        A("v_add_u32 v%d, v9, v10" % (VDMA + par))
    A("v_lshrrev_b32 v7, 2, v5")
    A("v_lshl_add_u32 v8, v6, 3, v7")
    A("v_lshlrev_b32 v8, 8, v8")
    A("v_and_b32 v9, 1, v6")
    A("v_lshl_or_b32 v9, v9, 2, v7")
    A("v_lshlrev_b32 v9, 1, v9")
    A("v_bfe_u32 v10, v5, 1, 1")
    A("v_xor_b32 v9, v9, v10")
    A("v_lshl_add_u32 v8, v9, 4, v8")
    A("v_and_b32 v9, 1, v5")
    A("v_lshl_add_u32 v8, v9, 3, v8")
    for st in range(3):
        A("v_add_u32 v%d, %d, v8" % (VWR + st, WST + st * WSTAGE))
    A("s_lshl_b32 s49, s32, 5")
    A("v_add_u32 v7, s49, v5")
    A("v_mul_u32_u24 v7, 160, v7")
    A("v_lshl_add_u32 v7, v6, 4, v7")
    A("v_add_u32 v%d, %d, v7" % (VHR, HST))
    A("v_mul_u32_u24 v7, 160, v2")
    A("v_lshl_add_u32 v7, v3, 4, v7")
    A("v_add_u32 v%d, %d, v7" % (VHW, HST))
    A("v_lshlrev_b32 v%d, 5, v3" % VMT)
    A("s_add_u32 s49, s49, s35")
    A("v_add_u32 v7, s49, v5")
    A("v_mul_u32_u24 v7, 3584, v7")
    A("v_lshl_add_u32 v7, v6, 3, v7")
    A("v_add_u32 v%d, s48, v7" % VEO)

    def dma_w(kc):
        st = kc % 3
        for j in range(8):
            A("s_add_u32 s49, s%d, %d" % (56 + j, kc * 64 * 3584))
            A("s_add_u32 m0, s%d, %d" % (64 + j, WST + st * WSTAGE))
            A.vm("buffer_load_dwordx4 v%d, s[16:19], s49 offen lds" % (VDMA + ((j >> 1) & 1)), "W%d" % kc)

    def xload(kc):
        for p in range(4):
            A.vm(
                "buffer_load_dwordx4 v[%d:%d], v%d, s[12:15], 0 offen offset:%d" % (XRAW + 4 * p, XRAW + 4 * p + 3, VXOFF + p, kc * 128),
                "x%d" % kc,
            )

    dma_w(0)
    dma_w(1)
    A.wait_vm("mod")
    A("v_add_f32 v52, 1.0, v52")
    A("v_add_f32 v53, 1.0, v53")
    A("v_cvt_pk_bf16_f32 v54, v52, v53")
    A("v_lshlrev_b32 v52, 16, v54")
    A("v_and_b32 v53, 0xffff0000, v54")
    A("v_lshlrev_b32 v7, 3, v0")
    A("ds_write_b64 v7, v[52:53]")
    A("ds_write_b64 v7, v[50:51] offset:2048")
    for p in range(4):
        m0, M0, m1, M1 = XRAW + 4 * p, XRAW + 4 * p + 1, XRAW + 4 * p + 2, XRAW + 4 * p + 3
        A("v_add_f32 v7, v%d, v%d" % (m0, m1))
        red8(A, 7, 8)
        A("v_mul_f32 v7, 0x3d800000, v7")
        A("v_sub_f32 v8, v%d, v7" % m0)
        A("v_sub_f32 v9, v%d, v7" % m1)
        A("v_mul_f32 v8, v8, v8")
        A("v_fmac_f32 v8, v9, v9")
        A("v_add_f32 v9, v%d, v%d" % (M0, M1))
        A("v_fmac_f32 v9, 0x42000000, v8")
        red8(A, 9, 8)
        A("v_mul_f32 v9, 0x3b000000, v9")
        A("v_add_f32 v9, 0x3727c5ac, v9")
        A("v_rsq_f32 v%d, v9" % (VA + p))
        A("v_mul_f32 v8, v7, v%d" % (VA + p))
        A("v_sub_f32 v%d, 0, v8" % (VB + p))
    xload(0)
    A("s_waitcnt lgkmcnt(0)")
    A("s_barrier")

    def ln_chunk(kc):
        sth = kc % 2
        A.lg("ds_read_b128 v[%d:%d], v%d offset:%d" % (MT, MT + 3, VMT, kc * 256), "mt")
        A.lg("ds_read_b128 v[%d:%d], v%d offset:%d" % (MT + 4, MT + 7, VMT, kc * 256 + 16), "mt")
        A.lg("ds_read_b128 v[%d:%d], v%d offset:%d" % (MT + 8, MT + 11, VMT, 2048 + kc * 256), "mt")
        A.lg("ds_read_b128 v[%d:%d], v%d offset:%d" % (MT + 12, MT + 15, VMT, 2048 + kc * 256 + 16), "mt")
        A.wait_vm("x%d" % kc)
        A.wait_lg("mt")
        for p in range(4):
            for d in range(4):
                r = XRAW + 4 * p + d
                A("v_lshlrev_b32 v%d, 16, v%d" % (LT + 2 * d, r))
                A("v_and_b32 v%d, 0xffff0000, v%d" % (LT + 2 * d + 1, r))
            for e in range(8):
                A("v_fma_f32 v%d, v%d, v%d, v%d" % (LT + e, LT + e, VA + p, VB + p))
            for e in range(8):
                A("v_fma_f32 v%d, v%d, v%d, v%d" % (LT + e, LT + e, MT + e, MT + 8 + e))
            for d in range(4):
                A("v_cvt_pk_bf16_f32 v%d, v%d, v%d" % (56 + d, LT + 2 * d, LT + 2 * d + 1))
            A.lg("ds_write_b128 v%d, v[56:59] offset:%d" % (VHW, sth * HSTAGE + p * 5120), "hw")

    ln_chunk(0)
    xload(1)
    A.wait_vm("W0")
    A.wait_lg()
    A("s_barrier")

    D = 4
    for kc in range(8):
        stw = kc % 3
        sth = kc % 2
        if kc + 2 < 8:
            dma_w(kc + 2)
        items = [(ss, seg, ctl) for ss in range(2) for ctl in range(7) for seg in range(2)]

        def issue(n):
            ss, seg, ctl = items[n]
            slot = n % NR
            r = WR + 4 * slot
            if seg == 0:
                A("v_xor_b32 v%d, %d, v%d" % (VWT + (ctl % 7), ctl * 32, VWR + stw))
            ad = VWT + (ctl % 7)
            for hf in range(2):
                A.lg(
                    "ds_read_b64_tr_b16 v[%d:%d], v%d offset:%d" % (r + 2 * hf, r + 2 * hf + 1, ad, seg * 16384 + ss * 8192 + hf * 1024),
                    "i%d" % n,
                )

        def hread(ss):
            for rb in range(2):
                A.lg(
                    "ds_read_b128 v[%d:%d], v%d offset:%d" % (HF[ss] + 4 * rb, HF[ss] + 4 * rb + 3, VHR, sth * HSTAGE + rb * 2560 + ss * 64),
                    "h%d" % ss,
                )

        hread(0)
        for n in range(D):
            issue(n)
        for n in range(len(items)):
            ss, seg, ctl = items[n]
            if n == 6:
                hread(1)
            A.wait_lg("i%d" % n)
            if n == 0:
                pass
            slot = n % NR
            r = WR + 4 * slot
            for rb in range(2):
                a = acc(seg, ctl, rb)
                c = "0" if (kc == 0 and ss == 0) else "v[%d:%d]" % (a, a + 3)
                A(
                    "v_mfma_f32_16x16x32_bf16 v[%d:%d], v[%d:%d], v[%d:%d], %s"
                    % (a, a + 3, r, r + 3, HF[ss] + 4 * rb, HF[ss] + 4 * rb + 3, c)
                )
            if n + D < len(items):
                issue(n + D)
        if kc + 1 < 8:
            ln_chunk(kc + 1)
            if kc + 2 < 8:
                xload(kc + 2)
            A.wait_vm("W%d" % (kc + 1))
            A.wait_lg()
            A("s_barrier")

    A("s_mov_b32 s50, 0x%x" % C1)
    A("s_mov_b32 s51, 0x%x" % C2)
    TT = 16
    for rb in range(2):
        for ctl in range(7):
            ag = acc(0, ctl, rb)
            au = acc(1, ctl, rb)
            t = TT + (ctl % 2) * 8
            for r in range(4):
                A("v_mul_f32 v%d, v%d, v%d" % (t + r, ag + r, ag + r))
            for r in range(4):
                A("v_fma_f32 v%d, v%d, s51, s50" % (t + r, t + r) if False else "v_mov_b32 v%d, s50" % (t + 4 + r))
            for r in range(4):
                A("v_fmac_f32 v%d, s51, v%d" % (t + 4 + r, t + r))
            for r in range(4):
                A("v_mul_f32 v%d, v%d, v%d" % (t + r, ag + r, t + 4 + r))
            for r in range(4):
                A("v_exp_f32 v%d, v%d" % (t + r, t + r))
            for r in range(4):
                A("v_add_f32 v%d, 1.0, v%d" % (t + r, t + r))
            for r in range(4):
                A("v_rcp_f32 v%d, v%d" % (t + r, t + r))
            for r in range(4):
                A("v_mul_f32 v%d, v%d, v%d" % (t + r, t + r, ag + r))
            for r in range(4):
                A("v_mul_f32 v%d, v%d, v%d" % (t + r, t + r, au + r))
            A("v_cvt_pk_bf16_f32 v%d, v%d, v%d" % (t + 4, t, t + 1))
            A("v_cvt_pk_bf16_f32 v%d, v%d, v%d" % (t + 5, t + 2, t + 3))
            A("s_mov_b32 s49, %d" % (rb * 16 * 3584))
            A("buffer_store_dwordx2 v[%d:%d], v%d, s[28:31], s49 offen offset:%d" % (t + 4, t + 5, VEO, ctl * 32))
    A.label("k3_end")
    A("s_endpgm")
```

```python
import sys
sys.path.insert(0, "gen")
from asmlib import Asm
from common import *

NAME = "adaLN_cond__sliding_local_dilated__glu_gated_geglu__prompt"

HEADER = """; adaLN + sliding dilated attention + GEGLU FFN block, multi-kernel pipeline (generated by gen/gen.py)
"""

def kd(name, vgpr, sgpr=100, accum=None):
    if accum is None:
        accum = ((vgpr + 3) // 4) * 4
    return f""".amdhsa_kernel {name}
  .amdhsa_next_free_vgpr {vgpr}
  .amdhsa_next_free_sgpr {sgpr}
  .amdhsa_accum_offset {accum}
  .amdhsa_group_segment_fixed_size 0
  .amdhsa_kernarg_size 96
  .amdhsa_user_sgpr_count 2
  .amdhsa_user_sgpr_kernarg_segment_ptr 1
  .amdhsa_system_sgpr_workgroup_id_x 1
.end_amdhsa_kernel
"""

def build(which=None, out=None):
    import importlib
    kernels = []
    import k0
    kernels.append(("k0_kernel", k0.gen_k0, 160, 256, 4096, 128))
    try:
        import k1
        kernels.append(("k1_kernel", k1.gen_k1, 256, 256, k1.LDS, k1.VGPR))
    except ImportError:
        pass
    try:
        import k24
        kernels.append(("k2_kernel", k24.gen_k2, 256, 256, k24.LDS, k24.VGPR))
    except ImportError:
        pass
    try:
        import k3
        kernels.append(("k3_kernel", k3.gen_k3, 256, 256, k3.LDS, k3.VGPR))
    except ImportError:
        pass
    try:
        import k24
        kernels.append(("k4_kernel", k24.gen_k4, 256, 256, k24.LDS, k24.VGPR))
    except ImportError:
        pass
    if which is not None:
        kernels = kernels[:which]
    txt = HEADER
    for (n, f, g, b, lds, vg) in kernels:
        txt += "; @launch kernel=%s grid=(%d,1,1) block=(%d,1,1) lds=%d\n" % (n, g, b, lds)
    txt += '.amdgcn_target "amdgcn-amd-amdhsa--gfx950"\n.text\n'
    for (n, f, g, b, lds, vg) in kernels:
        A = Asm()
        txt += ".globl %s\n.type %s,@function\n" % (n, n)
        f(A)
        txt += A.text()
    txt += '.section .rodata,"a"\n.p2align 6\n'
    for (n, f, g, b, lds, vg) in kernels:
        txt += kd(n, vg) + ".p2align 6\n"
    path = out or "cdna_kernels/%s.s" % NAME
    open(path, "w").write(txt)
    print("wrote", path, len(txt), "bytes")

if __name__ == "__main__":
    w = int(sys.argv[1]) if len(sys.argv) > 1 else None
    build(w)
```

```python
import re

TRANS = ("v_exp_f32", "v_log_f32", "v_rcp_f32", "v_rsq_f32", "v_sqrt_f32", "v_sin_f32", "v_cos_f32")

REG_RE = re.compile(r"^(-|abs\()?\s*([vsa])(\d+|\[(\d+):(\d+)\])\)?$")


def parse_reg(tok):
    tok = tok.strip()
    if tok in ("vcc",):
        return ("s", 106, 107)
    if tok == "vcc_lo":
        return ("s", 106, 106)
    if tok == "vcc_hi":
        return ("s", 107, 107)
    if tok == "exec":
        return ("s", 126, 127)
    if tok == "m0":
        return ("s", 124, 124)
    m = REG_RE.match(tok)
    if not m:
        return None
    kind = m.group(2)
    if m.group(4) is not None:
        return (kind, int(m.group(4)), int(m.group(5)))
    return (kind, int(m.group(3)), int(m.group(3)))


def split_ops(s):
    out, cur, depth = [], "", 0
    for ch in s:
        if ch == "[":
            depth += 1
        elif ch == "]":
            depth -= 1
        if ch == "," and depth == 0:
            out.append(cur.strip())
            cur = ""
        else:
            cur += ch
    if cur.strip():
        out.append(cur.strip())
    return out


class Inst:
    __slots__ = ("text", "name", "cls", "vw", "vr", "sw", "sr", "mfma", "ws", "dual")

    def __init__(self):
        self.vw = []
        self.vr = []
        self.sw = []
        self.sr = []
        self.mfma = None


def overlap(a, b):
    return a[0] == b[0] and a[1] <= b[2] and b[1] <= a[2]


def any_overlap(A, B):
    for a in A:
        for b in B:
            if overlap(a, b):
                return True
    return False


def classify(text):
    t = text.split(";")[0].strip()
    ins = Inst()
    ins.text = text
    if not t or t.endswith(":") or t.startswith("."):
        ins.name = None
        ins.cls = "none"
        ins.ws = 0
        return ins
    parts = t.split(None, 1)
    name = parts[0]
    rest = parts[1] if len(parts) > 1 else ""
    ops = split_ops(rest)
    clean = []
    mods = []
    for o in ops:
        toks = o.split()
        if toks:
            clean.append(toks[0])
            mods += toks[1:]
    ins.name = name
    ins.ws = 1
    regs = [parse_reg(o) for o in clean]

    def W(r):
        if r is None:
            return
        (ins.vw if r[0] in "va" else ins.sw).append(r)

    def R(r):
        if r is None:
            return
        (ins.vr if r[0] in "va" else ins.sr).append(r)

    if name == "s_nop":
        ins.cls = "nop"
        ins.ws = int(clean[0], 0) + 1
    elif name.startswith("v_mfma"):
        ins.cls = "mfma"
        W(regs[0])
        for r in regs[1:]:
            R(r)
        passes = 8 if "32x32" in name else 4
        ins.mfma = dict(d=regs[0], a=regs[1], b=regs[2], c=regs[3] if len(regs) > 3 else None, passes=passes)
    elif name.startswith("v_"):
        ins.cls = "valu"
        if name.startswith("v_permlane") and "swap" in name:
            for r in regs[:2]:
                W(r)
                R(r)
            ins.cls = "permswap"
        elif name.startswith("v_cmp"):
            W(regs[0])
            for r in regs[1:]:
                R(r)
        elif name.startswith("v_readfirstlane") or name.startswith("v_readlane"):
            W(regs[0])
            for r in regs[1:]:
                R(r)
            ins.cls = "readlane"
        elif name.startswith("v_fmac") or name.startswith("v_mac"):
            W(regs[0])
            R(regs[0])
            for r in regs[1:]:
                R(r)
        elif name.startswith("v_add_co") or name.startswith("v_addc_co") or name.startswith("v_sub_co"):
            W(regs[0])
            W(regs[1])
            for r in regs[2:]:
                R(r)
        else:
            W(regs[0])
            for r in regs[1:]:
                R(r)
            if name.startswith("v_cndmask") and len(regs) == 3:
                R(("s", 106, 107))
        if any(name.startswith(x) for x in TRANS):
            ins.cls = "trans"
        if "_dpp" in name or any(m.startswith(("quad_perm", "row_")) for m in mods):
            ins.dual = "dpp"
    elif name.startswith("ds_"):
        ins.cls = "ds"
        if name.startswith("ds_read") or name.startswith("ds_bpermute") or name.startswith("ds_swizzle"):
            W(regs[0])
            for r in regs[1:]:
                R(r)
        else:
            for r in regs:
                R(r)
    elif name.startswith("buffer_") or name.startswith("global_"):
        ins.cls = "vmem"
        if "load" in name:
            if "lds" in mods:
                ins.cls = "vmem_lds"
                for r in regs:
                    R(r)
                R(("s", 124, 124))
            else:
                W(regs[0])
                for r in regs[1:]:
                    R(r)
        else:
            for r in regs:
                R(r)
            if name.endswith("x4") or name.endswith("x3"):
                ins.dual = "widestore"
    elif name.startswith("s_"):
        ins.cls = "salu"
        if name in ("s_waitcnt", "s_barrier", "s_endpgm", "s_branch", "s_setprio", "s_sleep") or name.startswith(
            "s_cbranch"
        ) or name.startswith("s_cmp"):
            for r in regs:
                R(r)
        elif name.startswith("s_load"):
            W(regs[0])
            for r in regs[1:]:
                R(r)
        else:
            W(regs[0])
            for r in regs[1:]:
                R(r)
            if "saveexec" in name:
                W(("s", 126, 127))
    else:
        raise ValueError("unknown instruction: " + text)
    if not hasattr(ins, "dual"):
        ins.dual = None
    return ins


def required_wait(prev, cur):
    need = 0
    pc, cc = prev.cls, cur.cls
    isvalu_p = pc in ("valu", "trans", "permswap", "readlane")
    isvalu_c = cc in ("valu", "trans", "permswap", "readlane")
    if isvalu_p and cc == "mfma" and any_overlap(prev.vw, cur.vr):
        need = max(need, 2)
    if pc == "mfma":
        P = prev.mfma["passes"]
        d = prev.mfma["d"]
        if cc == "mfma":
            c = cur.mfma["c"]
            if c is not None and overlap(d, c):
                if c == d and cur.mfma["passes"] == P:
                    pass
                else:
                    need = max(need, 6 if P == 4 else 10)
            if overlap(d, cur.mfma["a"]) or overlap(d, cur.mfma["b"]):
                need = max(need, 8 if P == 4 else 12)
        else:
            if any_overlap([d], cur.vr) or any_overlap([d], cur.vw):
                need = max(need, 8 if P == 4 else 12)
    if pc == "mfma" and isvalu_c:
        c = prev.mfma["c"]
        if c is not None and any_overlap([c], cur.vw):
            need = max(need, 3 if prev.mfma["passes"] == 4 else 7)
    if pc == "trans" and isvalu_c and cc != "trans" and any_overlap(prev.vw, cur.vr):
        need = max(need, 1)
    if isvalu_p and prev.sw:
        if isvalu_c and any_overlap(prev.sw, cur.sr):
            need = max(need, 4 if cc == "readlane" else 2)
        if cc in ("vmem", "vmem_lds") and any_overlap(prev.sw, cur.sr):
            need = max(need, 5)
    if isvalu_p and any_overlap(prev.vw, cur.vr):
        if cc == "readlane":
            need = max(need, 1)
        if cc == "permswap":
            need = max(need, 2)
        if cur.dual == "dpp":
            need = max(need, 2)
    if pc == "salu" and cc == "vmem_lds" and any_overlap(prev.sw, [("s", 124, 124)]):
        need = max(need, 1)
    if pc == "vmem" and prev.dual == "widestore":
        data = prev.vr[:1]
        if any_overlap(data, cur.vw):
            need = max(need, 2)
    return need


class Asm:
    def __init__(self):
        self.lines = []
        self.hist = []
        self.vmq = []
        self.lgq = []

    def raw(self, s):
        self.lines.append(s)

    def flush_hist(self):
        self.hist = []

    def __call__(self, text):
        ins = classify(text)
        if ins.cls != "none":
            need = 0
            dist = 0
            for prev in reversed(self.hist[-24:]):
                req = required_wait(prev, ins)
                if req > dist:
                    need = max(need, req - dist)
                dist += prev.ws
                if dist > 20:
                    break
            if need > 0:
                n = need
                while n > 0:
                    k = min(n, 16)
                    nop = classify("s_nop %d" % (k - 1))
                    self.lines.append("    s_nop %d" % (k - 1))
                    self.hist.append(nop)
                    n -= k
            self.hist.append(ins)
            if len(self.hist) > 64:
                self.hist = self.hist[-32:]
        self.lines.append("    " + text)

    def label(self, name):
        self.lines.append(name + ":")

    def comment(self, s):
        self.lines.append("    ; " + s)

    def vm(self, text, tag=None):
        self(text)
        self.vmq.append(tag)

    def wait_vm(self, tag=None, extra=""):
        if tag is None:
            n = 0
            self.vmq = []
        else:
            idx = [i for i, t in enumerate(self.vmq) if t == tag]
            if not idx:
                return
            last = idx[-1]
            n = len(self.vmq) - 1 - last
            self.vmq = self.vmq[last + 1 :]
        assert n <= 63
        self("s_waitcnt vmcnt(%d)%s" % (n, extra))

    def lg(self, text, tag=None):
        self(text)
        self.lgq.append(tag)
        assert len(self.lgq) <= 15, "too many outstanding lgkm ops"

    def wait_lg(self, tag=None):
        if tag is None:
            n = 0
            self.lgq = []
        else:
            idx = [i for i, t in enumerate(self.lgq) if t == tag]
            if not idx:
                return
            last = idx[-1]
            n = len(self.lgq) - 1 - last
            self.lgq = self.lgq[last + 1 :]
        self("s_waitcnt lgkmcnt(%d)" % n)

    STAMP = False

    def stamp(self, i):
        if not Asm.STAMP:
            return
        self("s_memtime s[84:85]")
        self("s_waitcnt lgkmcnt(0)")
        self.lgq = []
        self("s_mov_b32 s%d, s84" % (86 + i))

    def stamp_flush(self, kidx, n, wave_sgpr):
        if not Asm.STAMP:
            return
        self("s_cmp_lg_u32 s2, 0")
        self("s_cbranch_scc1 stampskip_%d" % kidx)
        self("s_cmp_lg_u32 %s, 0" % wave_sgpr)
        self("s_cbranch_scc1 stampskip_%d" % kidx)
        self("s_add_u32 s80, s8, %d" % ((15 << 20) + kidx * 256))
        self("s_addc_u32 s81, s9, 0")
        self("s_mov_b32 s82, 256")
        self("s_mov_b32 s83, 0x20000")
        self("v_mov_b32 v1, 0")
        for i in range(n):
            self("v_mov_b32 v2, s%d" % (86 + i))
            self("buffer_store_dword v2, v1, s[80:83], 0 offen offset:%d" % (4 * i))
        self.label("stampskip_%d" % kidx)

    def text(self):
        return "\n".join(self.lines) + "\n"
```

```python
from asmlib import Asm
from common import *

MODTAB = 0
HST = 4096
HSTAGE = 12800
WST = HST + 2 * HSTAGE
WSTAGE = 24576
LDS = WST + 3 * WSTAGE
VGPR = 216

XRAW = 16
MT = 28
LT = 44
FR = [64, 96]
ACCQ = 128
ACCK = 144
ACCV = 164
VXOFF = 184
VA = 187
VB = 190
VHW = 193
VMT = 194
VDMA = 195
VWR = 197
VHR = 200
VOO = 201
BIAS0 = 202
BIAS1 = 206
BIAS0F = 210


def accreg(seg, b):
    if seg == 0:
        return ACCQ + 4 * (b - 1)
    if seg == 1:
        return ACCK + 4 * b
    return ACCV + 4 * b


def gen_k1(A):
    A.raw(".p2align 8")
    A.raw("k1_kernel:")
    A.flush_hist()
    A("s_cmp_ge_u32 s2, 256")
    A("s_cbranch_scc1 k1_end")
    A.stamp(0)
    A("s_load_dwordx4 s[4:7], s[0:1], 0")
    A("s_load_dwordx2 s[8:9], s[0:1], 88")
    A("v_lshrrev_b32 v1, 6, v0")
    A("v_readfirstlane_b32 s32, v1")
    A("s_lshr_b32 s33, s2, 3")
    A("s_and_b32 s34, s2, 7")
    A("s_lshl_b32 s35, s33, 6")
    A("v_lshrrev_b32 v2, 3, v0")
    A("v_and_b32 v3, 7, v0")
    A("v_and_b32 v4, 63, v0")
    A("v_and_b32 v5, 15, v0")
    A("v_bfe_u32 v6, v0, 4, 2")
    A("s_waitcnt lgkmcnt(0)")
    srd(A, 12, 4, 2097152)
    srd(A, 16, 6, 1572864)
    srd(A, 20, 8, 16384, WS_ST1)
    srd(A, 24, 8, 12288, WS_MOD)
    srd(A, 28, 8, 2097152, WS_O)
    A("s_sub_u32 s48, s35, 16")
    for p in range(3):
        A("v_add_u32 v7, s48, v2")
        if p:
            A("v_add_u32 v7, %d, v7" % (32 * p))
        A("v_max_i32 v7, 0, v7")
        A("v_lshlrev_b32 v%d, 10, v7" % (VXOFF + p))
        A("v_lshl_add_u32 v%d, v3, 4, v%d" % (VXOFF + p, VXOFF + p))
        A("v_lshlrev_b32 v7, 3, v7")
        A.vm("buffer_load_dwordx2 v[%d:%d], v7, s[20:23], 0 offen" % (44 + 2 * p, 45 + 2 * p), "st")
    A("v_lshlrev_b32 v7, 3, v0")
    A.vm("buffer_load_dwordx2 v[50:51], v7, s[24:27], 0 offen", "mod")
    A.vm("buffer_load_dwordx2 v[52:53], v7, s[24:27], 0 offen offset:2048", "mod")
    for j in range(6):
        A("s_mul_i32 s49, s32, 6")
        A("s_add_u32 s49, s49, %d" % j)
        A("s_lshr_b32 s50, s49, 3")
        A("s_and_b32 s51, s49, 7")
        A("s_lshl_b32 s52, s50, 10")
        A("s_mul_i32 s53, s51, 24576")
        A("s_add_u32 s52, s52, s53")
        A("s_lshl_b32 s53, s34, 7")
        A("s_add_u32 s%d, s52, s53" % (36 + j))
        A("s_lshl_b32 s52, s50, 13")
        A("s_lshl_b32 s53, s51, 10")
        A("s_add_u32 s%d, s52, s53" % (42 + j))
    A("v_lshrrev_b32 v7, 3, v4")
    A("v_and_b32 v8, 7, v4")
    A("v_and_b32 v9, 2, v7")
    for par in range(2):
        if par:
            A("v_or_b32 v10, 4, v9")
        else:
            A("v_mov_b32 v10, v9")
        A("v_xor_b32 v10, v8, v10")
        A("v_lshlrev_b32 v10, 4, v10")
        A("v_mul_u32_u24 v11, 3072, v7")
        A("v_add_u32 v%d, v10, v11" % (VDMA + par))
    A("v_lshrrev_b32 v7, 2, v5")
    A("v_lshl_add_u32 v7, v6, 3, v7")
    A("v_lshlrev_b32 v7, 7, v7")
    A("v_bfe_u32 v8, v5, 3, 1")
    A("v_lshlrev_b32 v8, 1, v8")
    A("v_and_b32 v9, 1, v6")
    A("v_lshl_or_b32 v8, v9, 2, v8")
    A("v_bfe_u32 v9, v5, 1, 1")
    A("s_lshl_b32 s49, s32, 1")
    A("v_add_u32 v9, s49, v9")
    A("v_xor_b32 v8, v8, v9")
    A("v_lshl_add_u32 v7, v8, 4, v7")
    A("v_and_b32 v9, 1, v5")
    A("v_lshl_add_u32 v7, v9, 3, v7")
    for st in range(3):
        A("v_add_u32 v%d, %d, v7" % (VWR + st, WST + st * WSTAGE))
    A("v_mul_u32_u24 v7, 160, v5")
    A("v_lshl_add_u32 v7, v6, 4, v7")
    A("v_add_u32 v%d, %d, v7" % (VHR, HST))
    A("v_mul_u32_u24 v7, 160, v2")
    A("v_lshl_add_u32 v7, v3, 4, v7")
    A("v_add_u32 v%d, %d, v7" % (VHW, HST))
    A("v_lshlrev_b32 v%d, 5, v3" % VMT)
    for r in range(4):
        A("v_lshlrev_b32 v7, 2, v6")
        A("v_sub_u32 v7, v5, v7")
        A("v_add_u32 v8, %d, v7" % (16 - r))
        A("v_and_b32 v9, 1, v8")
        A("v_cmp_ge_i32 vcc, 14, v8")
        A("v_cmp_eq_u32 s[50:51], 0, v9")
        A("s_and_b64 vcc, vcc, s[50:51]")
        A("v_mov_b32 v9, 0x%x" % NEG_BIG)
        A("v_cndmask_b32 v%d, v9, 0, vcc" % (BIAS0 + r))
        A("v_subrev_u32 v8, %d, v7" % r)
        A("v_and_b32 v9, 1, v8")
        A("v_cmp_le_i32 vcc, 0, v8")
        A("v_cmp_eq_u32 s[50:51], 0, v9")
        A("s_and_b64 vcc, vcc, s[50:51]")
        A("v_mov_b32 v9, 0x%x" % NEG_BIG)
        A("v_cndmask_b32 v%d, v9, 0, vcc" % (BIAS1 + r))
    A("s_cmp_eq_u32 s33, 0")
    A("s_cselect_b32 s49, 0x%x, 0" % NEG_BIG)
    for r in range(4):
        A("v_add_f32 v%d, s49, v%d" % (BIAS0F + r, BIAS0 + r))
    A("v_lshlrev_b32 v7, 10, v5")
    A("v_lshl_add_u32 v%d, v6, 3, v7" % VOO)
    A("s_lshl_b32 s54, s34, 2")
    A("s_add_u32 s54, s54, s32")
    A("s_lshl_b32 s54, s54, 5")
    A("s_lshl_b32 s55, s35, 10")
    A("s_add_u32 s54, s54, s55")

    def dma_w(kc):
        st = kc % 3
        for j in range(6):
            A("s_add_u32 s49, s%d, %d" % (36 + j, kc * 196608))
            A("s_add_u32 m0, s%d, %d" % (42 + j, WST + st * WSTAGE))
            A.vm("buffer_load_dwordx4 v%d, s[16:19], s49 offen lds" % (VDMA + (j & 1)), "W%d" % kc)

    def xload(kc):
        for p in range(3):
            A.vm(
                "buffer_load_dwordx4 v[%d:%d], v%d, s[12:15], 0 offen offset:%d" % (XRAW + 4 * p, XRAW + 4 * p + 3, VXOFF + p, kc * 128),
                "x%d" % kc,
            )

    dma_w(0)
    dma_w(1)
    xload(0)
    A.wait_vm("mod")
    A("v_add_f32 v52, 1.0, v52")
    A("v_add_f32 v53, 1.0, v53")
    A("v_cvt_pk_bf16_f32 v54, v52, v53")
    A("v_lshlrev_b32 v52, 16, v54")
    A("v_and_b32 v53, 0xffff0000, v54")
    A("v_lshlrev_b32 v7, 3, v0")
    A("ds_write_b64 v7, v[52:53]")
    A("ds_write_b64 v7, v[50:51] offset:2048")
    for p in range(3):
        A("v_mov_b32 v%d, v%d" % (VA + p, 45 + 2 * p))
        A("v_mul_f32 v7, v%d, v%d" % (44 + 2 * p, 45 + 2 * p))
        A("v_sub_f32 v%d, 0, v7" % (VB + p))
    A("s_waitcnt lgkmcnt(0)")
    A("s_barrier")

    skipflag = {"n": 0}

    def ln_chunk(kc, interleave=None):
        sth = kc % 2
        A.lg("ds_read_b128 v[%d:%d], v%d offset:%d" % (MT, MT + 3, VMT, kc * 256), "mt")
        A.lg("ds_read_b128 v[%d:%d], v%d offset:%d" % (MT + 4, MT + 7, VMT, kc * 256 + 16), "mt")
        A.lg("ds_read_b128 v[%d:%d], v%d offset:%d" % (MT + 8, MT + 11, VMT, 2048 + kc * 256), "mt")
        A.lg("ds_read_b128 v[%d:%d], v%d offset:%d" % (MT + 12, MT + 15, VMT, 2048 + kc * 256 + 16), "mt")
        A.wait_vm("x%d" % kc)
        A.wait_lg("mt")
        for p in range(3):
            lab = None
            if p == 2:
                skipflag["n"] += 1
                lab = "k1_skip%d" % skipflag["n"]
                A("s_cmp_ge_u32 s32, 2")
                A("s_cbranch_scc1 %s" % lab)
            for d in range(4):
                r = XRAW + 4 * p + d
                A("v_lshlrev_b32 v%d, 16, v%d" % (LT + 2 * d, r))
                A("v_and_b32 v%d, 0xffff0000, v%d" % (LT + 2 * d + 1, r))
            for e in range(8):
                A("v_fma_f32 v%d, v%d, v%d, v%d" % (LT + e, LT + e, VA + p, VB + p))
            for e in range(8):
                A("v_fma_f32 v%d, v%d, v%d, v%d" % (LT + e, LT + e, MT + e, MT + 8 + e))
            for d in range(4):
                A("v_cvt_pk_bf16_f32 v%d, v%d, v%d" % (56 + d, LT + 2 * d, LT + 2 * d + 1))
            A.lg("ds_write_b128 v%d, v[56:59] offset:%d" % (VHW, sth * HSTAGE + p * 5120), "hw")
            if lab:
                A.label(lab)
                A.flush_hist()
                A("s_nop 4")
            if interleave:
                pass

    ln_chunk(0)
    xload(1)
    A.wait_vm("W0")
    A.wait_lg()
    A("s_barrier")

    def read_frags(kc, ss, fs):
        stw = kc % 3
        sth = kc % 2
        base = FR[fs]
        ops = []
        for b in range(5):
            ops.append("ds_read_b128 v[%d:%d], v%d offset:%d" % (base + 4 * b, base + 4 * b + 3, VHR, sth * HSTAGE + b * 2560 + ss * 64))
        for seg in range(3):
            for hf in range(2):
                ops.append(
                    "ds_read_b64_tr_b16 v[%d:%d], v%d offset:%d"
                    % (base + 20 + 4 * seg + 2 * hf, base + 20 + 4 * seg + 2 * hf + 1, VWR + stw, seg * 8192 + ss * 4096 + hf * 512)
                )
        return ops

    def mfmas(kc, ss, fs):
        base = FR[fs]
        out = []
        for seg in range(3):
            for b in range(5):
                if seg == 0 and b == 0:
                    continue
                acc = accreg(seg, b)
                hf = "v[%d:%d]" % (base + 4 * b, base + 4 * b + 3)
                wf = "v[%d:%d]" % (base + 20 + 4 * seg, base + 20 + 4 * seg + 3)
                c = "0" if (kc == 0 and ss == 0) else "v[%d:%d]" % (acc, acc + 3)
                if seg == 2:
                    out.append("v_mfma_f32_16x16x32_bf16 v[%d:%d], %s, %s, %s" % (acc, acc + 3, hf, wf, c))
                else:
                    out.append("v_mfma_f32_16x16x32_bf16 v[%d:%d], %s, %s, %s" % (acc, acc + 3, wf, hf, c))
        return out

    A.stamp(1)
    for kc in range(8):
        if kc == 3:
            A.stamp(4)
        if kc == 4:
            A.stamp(5)
        if kc + 2 < 8:
            dma_w(kc + 2)
        r0 = read_frags(kc, 0, 0)
        r1 = read_frags(kc, 1, 1)
        for o in r0:
            A.lg(o, "f0")
        for o in r1[:4]:
            A.lg(o, "f1")
        A.wait_lg("f0")
        m0 = mfmas(kc, 0, 0)
        rest = r1[4:]
        for idx, m in enumerate(m0):
            A(m)
            if idx < len(rest):
                A.lg(rest[idx], "f1")
        A.wait_lg("f1")
        m1 = mfmas(kc, 1, 1)
        for m in m1:
            A(m)
        if kc + 1 < 8:
            ln_chunk(kc + 1)
            if kc + 2 < 8:
                xload(kc + 2)
            A.wait_vm("W%d" % (kc + 1))
            A.wait_lg()
            A("s_barrier")

    A.stamp(2)
    QF, KF, VF = 64, 72, 82
    S0, S1, PF, OO = 92, 96, 100, 104
    T = 108
    M = 116
    TMP = 117
    SUM = 118
    for b in range(1, 5):
        a = accreg(0, b)
        A("v_cvt_pk_bf16_f32 v%d, v%d, v%d" % (QF + 2 * (b - 1), a, a + 1))
        A("v_cvt_pk_bf16_f32 v%d, v%d, v%d" % (QF + 2 * (b - 1) + 1, a + 2, a + 3))
    for b in range(5):
        a = accreg(1, b)
        A("v_cvt_pk_bf16_f32 v%d, v%d, v%d" % (KF + 2 * b, a, a + 1))
        A("v_cvt_pk_bf16_f32 v%d, v%d, v%d" % (KF + 2 * b + 1, a + 2, a + 3))
        a = accreg(2, b)
        A("v_cvt_pk_bf16_f32 v%d, v%d, v%d" % (VF + 2 * b, a, a + 1))
        A("v_cvt_pk_bf16_f32 v%d, v%d, v%d" % (VF + 2 * b + 1, a + 2, a + 3))
    A("s_mov_b32 s56, 0x%x" % SC_ATT)
    for b in range(1, 5):
        qf = "v[%d:%d]" % (QF + 2 * (b - 1), QF + 2 * (b - 1) + 1)
        A("v_mfma_f32_16x16x16_bf16 v[%d:%d], v[%d:%d], %s, 0" % (S0, S0 + 3, KF + 2 * (b - 1), KF + 2 * (b - 1) + 1, qf))
        A("v_mfma_f32_16x16x16_bf16 v[%d:%d], v[%d:%d], %s, 0" % (S1, S1 + 3, KF + 2 * b, KF + 2 * b + 1, qf))
        b0 = BIAS0F if b == 1 else BIAS0
        for r in range(4):
            A("v_fma_f32 v%d, v%d, s56, v%d" % (T + r, S0 + r, b0 + r))
        for r in range(4):
            A("v_fma_f32 v%d, v%d, s56, v%d" % (T + 4 + r, S1 + r, BIAS1 + r))
        A("v_max3_f32 v%d, v%d, v%d, v%d" % (M, T, T + 1, T + 2))
        A("v_max3_f32 v%d, v%d, v%d, v%d" % (M, M, T + 3, T + 4))
        A("v_max3_f32 v%d, v%d, v%d, v%d" % (M, M, T + 5, T + 6))
        A("v_max_f32 v%d, v%d, v%d" % (M, M, T + 7))
        allreduce4g(A, "v_max_f32", M, TMP)
        for j in range(8):
            A("v_sub_f32 v%d, v%d, v%d" % (T + j, T + j, M))
        for j in range(8):
            A("v_exp_f32 v%d, v%d" % (T + j, T + j))
        A("v_add_f32 v%d, v%d, v%d" % (SUM, T, T + 1))
        for j in range(2, 8):
            A("v_add_f32 v%d, v%d, v%d" % (SUM, SUM, T + j))
        allreduce4g(A, "v_add_f32", SUM, TMP)
        A("v_rcp_f32 v%d, v%d" % (SUM, SUM))
        for j in range(8):
            A("v_mul_f32 v%d, v%d, v%d" % (T + j, T + j, SUM))
        for d in range(4):
            A("v_cvt_pk_bf16_f32 v%d, v%d, v%d" % (PF + d, T + 2 * d, T + 2 * d + 1))
        A("v_mfma_f32_16x16x32_bf16 v[%d:%d], v[%d:%d], v[%d:%d], 0" % (OO, OO + 3, VF + 2 * (b - 1), VF + 2 * (b - 1) + 3, PF, PF + 3))
        A("v_cvt_pk_bf16_f32 v%d, v%d, v%d" % (PF, OO, OO + 1))
        A("v_cvt_pk_bf16_f32 v%d, v%d, v%d" % (PF + 1, OO + 2, OO + 3))
        A("s_add_u32 s49, s54, %d" % ((b - 1) * 16384))
        A("buffer_store_dwordx2 v[%d:%d], v%d, s[28:31], s49 offen" % (PF, PF + 1, VOO))
    A.stamp(3)
    A.stamp_flush(1, 6, "s32")
    A.label("k1_end")
    A("s_endpgm")
```

```python
from asmlib import Asm
from common import *

NST = 8
PD = 7
STAGE = 16384
LDS = NST * STAGE
VGPR = 128

FR = [16, 40]
ACC = 64
XV = 80
GV = 88
T = 96
VDMA = 112
VHR = 114
VWR = 116
VEO = 118
VST = 119


def gen_gemm(A, name, which):
    KS = 1024 if which == 2 else 3584
    nK = 8 if which == 2 else 28
    gidx = 2 if which == 2 else 5
    A.raw(".p2align 8")
    A.raw(name + ":")
    A.flush_hist()
    A("s_cmp_ge_u32 s2, 256")
    A("s_cbranch_scc1 %s_end" % name)
    A.stamp(0)
    A("s_load_dwordx2 s[8:9], s[0:1], 88")
    if which == 2:
        A("s_load_dwordx2 s[4:5], s[0:1], 16")
        A("s_load_dwordx2 s[6:7], s[0:1], 0")
    else:
        A("s_load_dwordx2 s[4:5], s[0:1], 48")
        A("s_load_dwordx2 s[6:7], s[0:1], 72")
    A("v_lshrrev_b32 v1, 6, v0")
    A("v_readfirstlane_b32 s32, v1")
    A("s_and_b32 s33, s2, 7")
    A("s_lshr_b32 s34, s2, 3")
    A("s_and_b32 s34, s34, 3")
    A("s_lshl_b32 s34, s34, 3")
    A("s_add_u32 s33, s33, s34")
    A("s_lshr_b32 s34, s2, 5")
    A("s_lshl_b32 s35, s33, 6")
    A("v_and_b32 v4, 63, v0")
    A("v_and_b32 v5, 15, v0")
    A("v_bfe_u32 v6, v0, 4, 2")
    A("s_waitcnt lgkmcnt(0)")
    if which == 2:
        srd(A, 16, 8, 2097152, WS_O)
        srd(A, 20, 4, 524288)
        srd(A, 24, 6, 2097152)
        srd(A, 28, 8, 2097152, WS_X1)
        srd(A, 36, 8, 262144, WS_ST2)
    else:
        srd(A, 16, 8, 7340032, WS_HH)
        srd(A, 20, 4, 1835008)
        srd(A, 24, 8, 2097152, WS_X1)
        srd(A, 28, 6, 2097152)
    srd(A, 40, 8, 12288, WS_MOD)
    A("s_cmp_lt_u32 s32, 2")
    A("s_cselect_b32 s12, s16, s20")
    A("s_cselect_b32 s13, s17, s21")
    A("s_cselect_b32 s14, s18, s22")
    A("s_mov_b32 s15, 0x20000")
    A("s_and_b32 s44, s32, 1")
    A("s_lshl_b32 s44, s44, 2")
    A("s_cmp_lt_u32 s32, 2")
    A("s_movk_i32 s45, 128")
    A("s_cselect_b32 s45, s45, 65536")
    A("s_cselect_b32 s46, 0, 8192")
    for j in range(4):
        A("s_add_u32 s47, s44, %d" % j)
        A("s_lshl_b32 s48, s47, 3")
        A("s_add_u32 s49, s48, s35")
        A("s_mul_i32 s49, s49, %d" % KS)
        A("s_lshl_b32 s50, s48, 10")
        A("s_lshl_b32 s51, s34, 7")
        A("s_add_u32 s50, s50, s51")
        A("s_cmp_lt_u32 s32, 2")
        A("s_cselect_b32 s%d, s49, s50" % (52 + j))
        A("s_lshl_b32 s47, s47, 10")
        A("s_add_u32 s%d, s47, s46" % (56 + j))
    A("v_lshrrev_b32 v7, 3, v4")
    A("v_and_b32 v8, 7, v4")
    for par in range(2):
        A("v_lshrrev_b32 v9, 4, v4")
        if par:
            A("v_add_u32 v9, 4, v9")
        A("v_and_b32 v9, 7, v9")
        A("v_xor_b32 v9, v8, v9")
        A("v_lshlrev_b32 v9, 4, v9")
        A("v_mul_u32_u24 v10, %d, v7" % KS)
        A("v_add_u32 v9, v9, v10")
        A("v_and_b32 v10, 2, v7")
        if par:
            A("v_or_b32 v10, 4, v10")
        A("v_xor_b32 v10, v8, v10")
        A("v_lshlrev_b32 v10, 4, v10")
        A("v_lshl_add_u32 v10, v7, 10, v10")
        A("s_cmp_lt_u32 s32, 2")
        A("s_cselect_b64 vcc, -1, 0")
        A("v_cndmask_b32 v%d, v10, v9, vcc" % (VDMA + par))
    A("s_lshr_b32 s47, s32, 1")
    A("s_lshl_b32 s47, s47, 5")
    A("v_add_u32 v7, s47, v5")
    A("v_lshlrev_b32 v7, 7, v7")
    A("v_lshrrev_b32 v8, 1, v5")
    A("v_and_b32 v8, 7, v8")
    A("v_xor_b32 v8, v6, v8")
    A("v_lshl_add_u32 v%d, v8, 4, v7" % VHR)
    A("v_xor_b32 v%d, 64, v%d" % (VHR + 1, VHR))
    A("v_lshrrev_b32 v7, 2, v5")
    A("v_lshl_add_u32 v7, v6, 3, v7")
    A("v_lshlrev_b32 v7, 7, v7")
    A("v_bfe_u32 v8, v5, 3, 1")
    A("v_lshlrev_b32 v8, 1, v8")
    A("v_and_b32 v9, 1, v6")
    A("v_lshl_or_b32 v8, v9, 2, v8")
    A("v_bfe_u32 v9, v5, 1, 1")
    A("s_and_b32 s47, s32, 1")
    A("s_lshl_b32 s47, s47, 2")
    A("v_add_u32 v9, s47, v9")
    A("v_xor_b32 v8, v8, v9")
    A("v_lshl_add_u32 v7, v8, 4, v7")
    A("v_and_b32 v9, 1, v5")
    A("v_lshl_add_u32 v7, v9, 3, v7")
    A("v_add_u32 v%d, 8192, v7" % VWR)
    A("v_xor_b32 v%d, 32, v%d" % (VWR + 1, VWR))
    for q in range(2):
        A("v_add_u32 v%d, 0x10000, v%d" % (120 + q, VHR + q))
        A("v_add_u32 v%d, 0x10000, v%d" % (122 + q, VWR + q))
    A("s_lshr_b32 s47, s32, 1")
    A("s_lshl_b32 s47, s47, 5")
    A("s_add_u32 s47, s47, s35")
    A("v_add_u32 v7, s47, v5")
    A("v_lshlrev_b32 v8, 10, v7")
    A("s_and_b32 s48, s32, 1")
    A("s_lshl_b32 s48, s48, 5")
    A("s_lshl_b32 s49, s34, 6")
    A("s_add_u32 s48, s48, s49")
    A("v_lshl_add_u32 v9, v6, 2, s48")
    A("v_lshl_add_u32 v%d, v9, 1, v8" % VEO)
    A("s_lshl_b32 s48, s34, 1")
    A("s_and_b32 s49, s32, 1")
    A("s_add_u32 s48, s48, s49")
    A("v_lshl_add_u32 v10, v7, 4, s48")
    A("v_lshlrev_b32 v%d, 3, v10" % VST)
    A("v_lshlrev_b32 v10, 2, v9")
    A("s_mov_b32 s47, %d" % (gidx * 2048))
    A.vm("buffer_load_dwordx4 v[%d:%d], v10, s[40:43], s47 offen" % (GV, GV + 3), "ep")
    A.vm("buffer_load_dwordx4 v[%d:%d], v10, s[40:43], s47 offen offset:64" % (GV + 4, GV + 7), "ep")
    for ctl in range(2):
        for rb in range(2):
            r = XV + 2 * (ctl * 2 + rb)
            A("s_mov_b32 s47, %d" % (rb * 16384))
            A.vm("buffer_load_dwordx2 v[%d:%d], v%d, s[24:27], s47 offen offset:%d" % (r, r + 1, VEO, ctl * 32), "ep")

    def dma(kc):
        st = kc % NST
        for j in range(4):
            A("s_add_u32 m0, s%d, %d" % (56 + j, st * STAGE))
            A.vm("buffer_load_dwordx4 v%d, s[12:15], s%d offen lds" % (VDMA + (j & 1), 52 + j), "c%d" % kc)
            A("s_add_u32 s%d, s%d, s45" % (52 + j, 52 + j))

    def reads(kc, ss):
        st = kc % NST
        base = FR[ss]
        for rb in range(2):
            A.lg("ds_read_b128 v[%d:%d], v%d offset:%d" % (base + 4 * rb, base + 4 * rb + 3, (VHR + ss) if st < 4 else (120 + ss), (st & 3) * STAGE + rb * 2048), "r%d_%d" % (kc, ss))
        for ctl in range(2):
            for hf in range(2):
                A.lg(
                    "ds_read_b64_tr_b16 v[%d:%d], v%d offset:%d"
                    % (base + 8 + 4 * ctl + 2 * hf, base + 8 + 4 * ctl + 2 * hf + 1, (VWR + ctl) if st < 4 else (122 + ctl), (st & 3) * STAGE + ss * 4096 + hf * 512),
                    "r%d_%d" % (kc, ss),
                )

    def mfmas(kc, ss):
        base = FR[ss]
        for ctl in range(2):
            for rb in range(2):
                acc = ACC + (ctl * 2 + rb) * 4
                c = "0" if (kc == 0 and ss == 0) else "v[%d:%d]" % (acc, acc + 3)
                A(
                    "v_mfma_f32_16x16x32_bf16 v[%d:%d], v[%d:%d], v[%d:%d], %s"
                    % (acc, acc + 3, base + 8 + 4 * ctl, base + 8 + 4 * ctl + 3, base + 4 * rb, base + 4 * rb + 3, c)
                )

    for kc in range(min(PD, nK)):
        dma(kc)
    A.stamp(1)
    A.wait_vm("c0")
    A("s_barrier")
    reads(0, 0)
    for kc in range(nK):
        if kc == 4:
            A.stamp(4)
        if kc == 5:
            A.stamp(5)
        reads(kc, 1)
        A.wait_lg("r%d_0" % kc)
        mfmas(kc, 0)
        if kc + 1 < nK:
            A.wait_vm("c%d" % (kc + 1))
            A("s_barrier")
            if kc + PD < nK:
                dma(kc + PD)
            reads(kc + 1, 0)
        A.wait_lg("r%d_1" % kc)
        mfmas(kc, 1)
    A.stamp(2)
    A.wait_vm()
    for rb in range(2):
        for ctl in range(2):
            acc = ACC + (ctl * 2 + rb) * 4
            xr = XV + 2 * (ctl * 2 + rb)
            tb = T + ctl * 4
            A("v_lshlrev_b32 v%d, 16, v%d" % (tb, xr))
            A("v_and_b32 v%d, 0xffff0000, v%d" % (tb + 1, xr))
            A("v_lshlrev_b32 v%d, 16, v%d" % (tb + 2, xr + 1))
            A("v_and_b32 v%d, 0xffff0000, v%d" % (tb + 3, xr + 1))
            for r in range(4):
                A("v_fma_f32 v%d, v%d, v%d, v%d" % (tb + r, GV + 4 * ctl + r, acc + r, tb + r))
            A("v_cvt_pk_bf16_f32 v%d, v%d, v%d" % (xr, tb, tb + 1))
            A("v_cvt_pk_bf16_f32 v%d, v%d, v%d" % (xr + 1, tb + 2, tb + 3))
            A("s_mov_b32 s47, %d" % (rb * 16384))
            A("buffer_store_dwordx2 v[%d:%d], v%d, s[28:31], s47 offen offset:%d" % (xr, xr + 1, VEO, ctl * 32))
            if which == 2:
                A("v_lshlrev_b32 v%d, 16, v%d" % (tb, xr))
                A("v_and_b32 v%d, 0xffff0000, v%d" % (tb + 1, xr))
                A("v_lshlrev_b32 v%d, 16, v%d" % (tb + 2, xr + 1))
                A("v_and_b32 v%d, 0xffff0000, v%d" % (tb + 3, xr + 1))
        if which == 2:
            S, M2, TMP = T + 8, T + 9, T + 10
            A("v_add_f32 v%d, v%d, v%d" % (S, T, T + 1))
            for j in range(2, 8):
                A("v_add_f32 v%d, v%d, v%d" % (S, S, T + j))
            allreduce4g(A, "v_add_f32", S, TMP)
            A("v_mul_f32 v%d, 0x3d000000, v%d" % (S, S))
            A("v_mov_b32 v%d, 0" % M2)
            for j in range(8):
                A("v_sub_f32 v%d, v%d, v%d" % (TMP, T + j, S))
                A("v_fmac_f32 v%d, v%d, v%d" % (M2, TMP, TMP))
            allreduce4g(A, "v_add_f32", M2, TMP)
            A("v_mov_b32 v%d, v%d" % (T + 12, S))
            A("v_mov_b32 v%d, v%d" % (T + 13, M2))
            A("s_mov_b32 s47, %d" % (rb * 16 * 128))
            A("buffer_store_dwordx2 v[%d:%d], v%d, s[36:39], s47 offen" % (T + 12, T + 13, VST))
    A.stamp(3)
    A.stamp_flush(which, 6, "s32")
    A.label(name + "_end")
    A("s_endpgm")


def gen_k2(A):
    gen_gemm(A, "k2_kernel", 2)


def gen_k4(A):
    gen_gemm(A, "k4_kernel", 4)
```

```python
import struct
from asmlib import Asm
from common import *

MODTAB = 0
HST = 4096
HSTAGE = 20480
WST = HST + 2 * HSTAGE
WSTAGE = 32768
LDS = WST + 3 * WSTAGE
VGPR = 248


def f2h(x):
    return struct.unpack("<I", struct.pack("<f", x))[0]


C1 = f2h(-2.0 * 0.7978845608028654 * 1.4426950408889634)
C2 = f2h(-2.0 * 0.7978845608028654 * 1.4426950408889634 * 0.044715)

XRAW = 16
MT = 32
LT = 48
HF = [60, 68]
WR = 76
NR = 8
ACC = 108
VXOFF = 220
VA = 224
VB = 228
VHW = 232
VMT = 233
VDMA = 234
VWR = 236
VHR = 239
VEO = 240
VWT = 241


def acc(seg, ctl, rb):
    return ACC + ((seg * 7 + ctl) * 2 + rb) * 4


def gen_k3(A):
    A.raw(".p2align 8")
    A.raw("k3_kernel:")
    A.flush_hist()
    A("s_cmp_ge_u32 s2, 256")
    A("s_cbranch_scc1 k3_end")
    A.stamp(0)
    A("s_load_dwordx4 s[4:7], s[0:1], 32")
    A("s_load_dwordx2 s[8:9], s[0:1], 88")
    A("v_lshrrev_b32 v1, 6, v0")
    A("v_readfirstlane_b32 s32, v1")
    A("s_lshr_b32 s33, s2, 4")
    A("s_and_b32 s34, s2, 15")
    A("s_lshl_b32 s35, s33, 7")
    A("v_lshrrev_b32 v2, 3, v0")
    A("v_and_b32 v3, 7, v0")
    A("v_and_b32 v4, 63, v0")
    A("v_and_b32 v5, 15, v0")
    A("v_bfe_u32 v6, v0, 4, 2")
    A("s_waitcnt lgkmcnt(0)")
    srd(A, 12, 8, 2097152, WS_X1)
    srd(A, 16, 4, 1835008)
    srd(A, 40, 6, 1835008)
    srd(A, 20, 8, 262144, WS_ST2)
    srd(A, 24, 8, 12288, WS_MOD)
    srd(A, 28, 8, 7340032, WS_HH)
    A("s_cmp_lt_u32 s32, 2")
    A("s_cselect_b32 s16, s16, s40")
    A("s_cselect_b32 s17, s17, s41")
    for p in range(4):
        A("v_add_u32 v7, s35, v2")
        if p:
            A("v_add_u32 v7, %d, v7" % (32 * p))
        A("v_lshlrev_b32 v%d, 10, v7" % (VXOFF + p))
        A("v_lshl_add_u32 v%d, v3, 4, v%d" % (VXOFF + p, VXOFF + p))
        A("v_lshlrev_b32 v7, 7, v7")
        A("v_lshl_add_u32 v7, v3, 4, v7")
        A.vm("buffer_load_dwordx4 v[%d:%d], v7, s[20:23], 0 offen" % (XRAW + 4 * p, XRAW + 4 * p + 3), "st")
    A("v_lshlrev_b32 v7, 3, v0")
    A("s_movk_i32 s47, 6144")
    A.vm("buffer_load_dwordx2 v[50:51], v7, s[24:27], s47 offen", "mod")
    A.vm("buffer_load_dwordx2 v[52:53], v7, s[24:27], s47 offen offset:2048", "mod")
    A("s_mul_i32 s48, s34, 224")
    for j in range(8):
        A("s_and_b32 s49, s32, 1")
        A("s_lshl_b32 s49, s49, 3")
        A("s_add_u32 s49, s49, %d" % j)
        A("s_mul_i32 s50, s49, 14336")
        A("s_add_u32 s%d, s50, s48" % (56 + j))
        A("s_lshr_b32 s50, s32, 1")
        A("s_lshl_b32 s50, s50, 14")
        A("s_lshl_b32 s49, s49, 10")
        A("s_add_u32 s%d, s50, s49" % (64 + j))
    A("v_lshrrev_b32 v7, 4, v4")
    A("v_and_b32 v8, 15, v4")
    for par in range(2):
        if par:
            A("v_or_b32 v9, 4, v7")
        else:
            A("v_mov_b32 v9, v7")
        A("v_lshlrev_b32 v9, 1, v9")
        A("v_xor_b32 v9, v8, v9")
        A("v_lshlrev_b32 v9, 4, v9")
        A("v_mul_u32_u24 v10, 3584, v7")
        A("v_add_u32 v%d, v9, v10" % (VDMA + par))
    A("v_lshrrev_b32 v7, 2, v5")
    A("v_lshl_add_u32 v8, v6, 3, v7")
    A("v_lshlrev_b32 v8, 8, v8")
    A("v_and_b32 v9, 1, v6")
    A("v_lshl_or_b32 v9, v9, 2, v7")
    A("v_lshlrev_b32 v9, 1, v9")
    A("v_bfe_u32 v10, v5, 1, 1")
    A("v_xor_b32 v9, v9, v10")
    A("v_lshl_add_u32 v8, v9, 4, v8")
    A("v_and_b32 v9, 1, v5")
    A("v_lshl_add_u32 v8, v9, 3, v8")
    for st in range(3):
        A("v_add_u32 v%d, %d, v8" % (VWR + st, WST + st * WSTAGE))
    A("s_lshl_b32 s49, s32, 5")
    A("v_add_u32 v7, s49, v5")
    A("v_mul_u32_u24 v7, 160, v7")
    A("v_lshl_add_u32 v7, v6, 4, v7")
    A("v_add_u32 v%d, %d, v7" % (VHR, HST))
    A("v_mul_u32_u24 v7, 160, v2")
    A("v_lshl_add_u32 v7, v3, 4, v7")
    A("v_add_u32 v%d, %d, v7" % (VHW, HST))
    A("v_lshlrev_b32 v%d, 5, v3" % VMT)
    A("s_add_u32 s49, s49, s35")
    A("v_add_u32 v7, s49, v5")
    A("v_mul_u32_u24 v7, 3584, v7")
    A("v_lshl_add_u32 v7, v6, 3, v7")
    A("v_add_u32 v%d, s48, v7" % VEO)

    def dma_w(kc):
        st = kc % 3
        for j in range(8):
            A("s_add_u32 s49, s%d, %d" % (56 + j, kc * 64 * 3584))
            A("s_add_u32 m0, s%d, %d" % (64 + j, WST + st * WSTAGE))
            A.vm("buffer_load_dwordx4 v%d, s[16:19], s49 offen lds" % (VDMA + ((j >> 1) & 1)), "W%d" % kc)

    def xload(kc):
        for p in range(4):
            A.vm(
                "buffer_load_dwordx4 v[%d:%d], v%d, s[12:15], 0 offen offset:%d" % (XRAW + 4 * p, XRAW + 4 * p + 3, VXOFF + p, kc * 128),
                "x%d" % kc,
            )

    dma_w(0)
    dma_w(1)
    A.wait_vm("mod")
    A("v_add_f32 v52, 1.0, v52")
    A("v_add_f32 v53, 1.0, v53")
    A("v_cvt_pk_bf16_f32 v54, v52, v53")
    A("v_lshlrev_b32 v52, 16, v54")
    A("v_and_b32 v53, 0xffff0000, v54")
    A("v_lshlrev_b32 v7, 3, v0")
    A("ds_write_b64 v7, v[52:53]")
    A("ds_write_b64 v7, v[50:51] offset:2048")
    for p in range(4):
        m0, M0, m1, M1 = XRAW + 4 * p, XRAW + 4 * p + 1, XRAW + 4 * p + 2, XRAW + 4 * p + 3
        A("v_add_f32 v7, v%d, v%d" % (m0, m1))
        red8(A, 7, 8)
        A("v_mul_f32 v7, 0x3d800000, v7")
        A("v_sub_f32 v8, v%d, v7" % m0)
        A("v_sub_f32 v9, v%d, v7" % m1)
        A("v_mul_f32 v8, v8, v8")
        A("v_fmac_f32 v8, v9, v9")
        A("v_add_f32 v9, v%d, v%d" % (M0, M1))
        A("v_fmac_f32 v9, 0x42000000, v8")
        red8(A, 9, 8)
        A("v_mul_f32 v9, 0x3b000000, v9")
        A("v_add_f32 v9, 0x3727c5ac, v9")
        A("v_rsq_f32 v%d, v9" % (VA + p))
        A("v_mul_f32 v8, v7, v%d" % (VA + p))
        A("v_sub_f32 v%d, 0, v8" % (VB + p))
    xload(0)
    A("s_waitcnt lgkmcnt(0)")
    A("s_barrier")

    def ln_chunk(kc):
        sth = kc % 2
        A.lg("ds_read_b128 v[%d:%d], v%d offset:%d" % (MT, MT + 3, VMT, kc * 256), "mt")
        A.lg("ds_read_b128 v[%d:%d], v%d offset:%d" % (MT + 4, MT + 7, VMT, kc * 256 + 16), "mt")
        A.lg("ds_read_b128 v[%d:%d], v%d offset:%d" % (MT + 8, MT + 11, VMT, 2048 + kc * 256), "mt")
        A.lg("ds_read_b128 v[%d:%d], v%d offset:%d" % (MT + 12, MT + 15, VMT, 2048 + kc * 256 + 16), "mt")
        A.wait_vm("x%d" % kc)
        A.wait_lg("mt")
        for p in range(4):
            for d in range(4):
                r = XRAW + 4 * p + d
                A("v_lshlrev_b32 v%d, 16, v%d" % (LT + 2 * d, r))
                A("v_and_b32 v%d, 0xffff0000, v%d" % (LT + 2 * d + 1, r))
            for e in range(8):
                A("v_fma_f32 v%d, v%d, v%d, v%d" % (LT + e, LT + e, VA + p, VB + p))
            for e in range(8):
                A("v_fma_f32 v%d, v%d, v%d, v%d" % (LT + e, LT + e, MT + e, MT + 8 + e))
            for d in range(4):
                A("v_cvt_pk_bf16_f32 v%d, v%d, v%d" % (56 + d, LT + 2 * d, LT + 2 * d + 1))
            A.lg("ds_write_b128 v%d, v[56:59] offset:%d" % (VHW, sth * HSTAGE + p * 5120), "hw")

    ln_chunk(0)
    xload(1)
    A.wait_vm("W0")
    A.wait_lg()
    A("s_barrier")

    D = 4
    A.stamp(1)
    for kc in range(8):
        if kc == 3:
            A.stamp(4)
        if kc == 4:
            A.stamp(5)
        stw = kc % 3
        sth = kc % 2
        if kc + 2 < 8:
            dma_w(kc + 2)
        items = [(ss, seg, ctl) for ss in range(2) for ctl in range(7) for seg in range(2)]

        def issue(n):
            ss, seg, ctl = items[n]
            slot = n % NR
            r = WR + 4 * slot
            if seg == 0:
                A("v_xor_b32 v%d, %d, v%d" % (VWT + (ctl % 7), ctl * 32, VWR + stw))
            ad = VWT + (ctl % 7)
            for hf in range(2):
                A.lg(
                    "ds_read_b64_tr_b16 v[%d:%d], v%d offset:%d" % (r + 2 * hf, r + 2 * hf + 1, ad, seg * 16384 + ss * 8192 + hf * 1024),
                    "i%d" % n,
                )

        def hread(ss):
            for rb in range(2):
                A.lg(
                    "ds_read_b128 v[%d:%d], v%d offset:%d" % (HF[ss] + 4 * rb, HF[ss] + 4 * rb + 3, VHR, sth * HSTAGE + rb * 2560 + ss * 64),
                    "h%d" % ss,
                )

        hread(0)
        for n in range(D):
            issue(n)
        for n in range(len(items)):
            ss, seg, ctl = items[n]
            if n == 6:
                hread(1)
            A.wait_lg("i%d" % n)
            if n == 0:
                pass
            slot = n % NR
            r = WR + 4 * slot
            for rb in range(2):
                a = acc(seg, ctl, rb)
                c = "0" if (kc == 0 and ss == 0) else "v[%d:%d]" % (a, a + 3)
                A(
                    "v_mfma_f32_16x16x32_bf16 v[%d:%d], v[%d:%d], v[%d:%d], %s"
                    % (a, a + 3, r, r + 3, HF[ss] + 4 * rb, HF[ss] + 4 * rb + 3, c)
                )
            if n + D < len(items):
                issue(n + D)
        if kc + 1 < 8:
            ln_chunk(kc + 1)
            if kc + 2 < 8:
                xload(kc + 2)
            A.wait_vm("W%d" % (kc + 1))
            A.wait_lg()
            A("s_barrier")

    A.stamp(2)
    A("s_mov_b32 s50, 0x%x" % C1)
    A("s_mov_b32 s51, 0x%x" % C2)
    TT = 16
    for rb in range(2):
        for ctl in range(7):
            ag = acc(0, ctl, rb)
            au = acc(1, ctl, rb)
            t = TT + (ctl % 2) * 8
            for r in range(4):
                A("v_mul_f32 v%d, v%d, v%d" % (t + r, ag + r, ag + r))
            for r in range(4):
                A("v_fma_f32 v%d, v%d, s51, s50" % (t + r, t + r) if False else "v_mov_b32 v%d, s50" % (t + 4 + r))
            for r in range(4):
                A("v_fmac_f32 v%d, s51, v%d" % (t + 4 + r, t + r))
            for r in range(4):
                A("v_mul_f32 v%d, v%d, v%d" % (t + r, ag + r, t + 4 + r))
            for r in range(4):
                A("v_exp_f32 v%d, v%d" % (t + r, t + r))
            for r in range(4):
                A("v_add_f32 v%d, 1.0, v%d" % (t + r, t + r))
            for r in range(4):
                A("v_rcp_f32 v%d, v%d" % (t + r, t + r))
            for r in range(4):
                A("v_mul_f32 v%d, v%d, v%d" % (t + r, t + r, ag + r))
            for r in range(4):
                A("v_mul_f32 v%d, v%d, v%d" % (t + r, t + r, au + r))
            A("v_cvt_pk_bf16_f32 v%d, v%d, v%d" % (t + 4, t, t + 1))
            A("v_cvt_pk_bf16_f32 v%d, v%d, v%d" % (t + 5, t + 2, t + 3))
            A("s_mov_b32 s49, %d" % (rb * 16 * 3584))
            A("buffer_store_dwordx2 v[%d:%d], v%d, s[28:31], s49 offen offset:%d" % (t + 4, t + 5, VEO, ctl * 32))
    A.stamp(3)
    A.stamp_flush(3, 6, "s32")
    A.label("k3_end")
    A("s_endpgm")
```

```python
import sys
sys.path.insert(0, "gen")
from asmlib import Asm
from common import *

NAME = "adaLN_cond__sliding_local_dilated__glu_gated_geglu__prompt"

HEADER = """; adaLN + sliding dilated attention + GEGLU FFN block, multi-kernel pipeline (generated by gen/gen.py)
"""

def kd(name, vgpr, sgpr=100, accum=None):
    if accum is None:
        accum = ((vgpr + 3) // 4) * 4
    return f""".amdhsa_kernel {name}
  .amdhsa_next_free_vgpr {vgpr}
  .amdhsa_next_free_sgpr {sgpr}
  .amdhsa_accum_offset {accum}
  .amdhsa_group_segment_fixed_size 0
  .amdhsa_kernarg_size 96
  .amdhsa_user_sgpr_count 2
  .amdhsa_user_sgpr_kernarg_segment_ptr 1
  .amdhsa_system_sgpr_workgroup_id_x 1
.end_amdhsa_kernel
"""

def build(which=None, out=None):
    import importlib
    kernels = []
    import k0
    kernels.append(("k0_kernel", k0.gen_k0, 256, 256, 4096, 128))
    try:
        import k1
        kernels.append(("k1_kernel", k1.gen_k1, 256, 256, k1.LDS, k1.VGPR))
    except ImportError:
        pass
    try:
        import k24
        kernels.append(("k2_kernel", k24.gen_k2, 256, 256, k24.LDS, k24.VGPR))
    except ImportError:
        pass
    try:
        import k3
        kernels.append(("k3_kernel", k3.gen_k3, 256, 256, k3.LDS, k3.VGPR))
    except ImportError:
        pass
    try:
        import k24
        kernels.append(("k4_kernel", k24.gen_k4, 256, 256, k24.LDS, k24.VGPR))
    except ImportError:
        pass
    if which is not None:
        kernels = kernels[:which]
    txt = HEADER
    for (n, f, g, b, lds, vg) in kernels:
        txt += "; @launch kernel=%s grid=(%d,1,1) block=(%d,1,1) lds=%d\n" % (n, g, b, lds)
    txt += '.amdgcn_target "amdgcn-amd-amdhsa--gfx950"\n.text\n'
    for (n, f, g, b, lds, vg) in kernels:
        A = Asm()
        txt += ".globl %s\n.type %s,@function\n" % (n, n)
        f(A)
        txt += A.text()
    txt += '.section .rodata,"a"\n.p2align 6\n'
    for (n, f, g, b, lds, vg) in kernels:
        txt += kd(n, vg) + ".p2align 6\n"
    path = out or "cdna_kernels/%s.s" % NAME
    open(path, "w").write(txt)
    print("wrote", path, len(txt), "bytes")

if __name__ == "__main__":
    w = int(sys.argv[1]) if len(sys.argv) > 1 else None
    if len(sys.argv) > 2 and sys.argv[2] == "stamp":
        Asm.STAMP = True
        build(w, out="stamp.s")
    else:
        build(w)
```

```python
from asmlib import Asm
from common import *


def gen_k0(A):
    A.raw(".p2align 8")
    A.raw("k0_kernel:")
    A.flush_hist()
    A("s_cmp_ge_u32 s2, 256")
    A("s_cbranch_scc1 k0_end")
    A("s_cmp_ge_u32 s2, 160")
    A("s_cbranch_scc1 k0_warm")
    A("s_cmp_ge_u32 s2, 96")
    A("s_cbranch_scc1 k0_stats")
    A("s_load_dwordx4 s[4:7], s[0:1], 56")
    A("s_load_dwordx2 s[8:9], s[0:1], 88")
    A("v_and_b32 v1, 15, v0")
    A("v_lshrrev_b32 v2, 4, v0")
    A("v_mul_u32_u24 v3, 0x30000, v2")
    A("v_lshlrev_b32 v4, 2, v1")
    A("v_add_u32 v3, v3, v4")
    A("s_lshl_b32 s3, s2, 6")
    A("v_add_u32 v3, s3, v3")
    A("v_lshlrev_b32 v5, 2, v0")
    A("s_waitcnt lgkmcnt(0)")
    srd(A, 12, 4, 1024)
    srd(A, 16, 6, 3145728)
    srd(A, 20, 8, 12288, WS_MOD)
    A("buffer_load_dword v6, v5, s[12:15], 0 offen")
    for i in range(32):
        A("s_mov_b32 s24, %d" % (i * 6144))
        A("buffer_load_dword v%d, v3, s[16:19], s24 offen" % (32 + i))
    A("s_waitcnt vmcnt(32)")
    A("v_lshlrev_b32 v7, 16, v6")
    A("v_and_b32 v8, 0xffff0000, v6")
    for r in (7, 8):
        A("v_mul_f32 v9, 0xbfb8aa3b, v%d" % r)
        A("v_exp_f32 v9, v9")
        A("v_add_f32 v9, 1.0, v9")
        A("v_rcp_f32 v9, v9")
        A("v_mul_f32 v%d, v%d, v9" % (r, r))
    A("v_cvt_pk_bf16_f32 v9, v7, v8")
    A("v_lshlrev_b32 v10, 16, v9")
    A("v_and_b32 v11, 0xffff0000, v9")
    A("v_lshlrev_b32 v12, 3, v0")
    A("ds_write_b64 v12, v[10:11]")
    A("s_waitcnt lgkmcnt(0)")
    A("s_barrier")
    A("v_lshlrev_b32 v12, 7, v2")
    for j in range(8):
        A("ds_read_b128 v[%d:%d], v12 offset:%d" % (64 + 4 * j, 67 + 4 * j, j * 16))
    A("v_mov_b32 v18, 0")
    A("v_mov_b32 v19, 0")
    A("s_waitcnt vmcnt(0) lgkmcnt(0)")
    for i in range(32):
        A("v_lshlrev_b32 v15, 16, v%d" % (32 + i))
        A("v_and_b32 v16, 0xffff0000, v%d" % (32 + i))
        A("v_fmac_f32 v18, v%d, v15" % (64 + i))
        A("v_fmac_f32 v19, v%d, v16" % (64 + i))
    A("v_lshlrev_b32 v12, 4, v2")
    A("v_add_u32 v12, v12, v1")
    A("v_lshlrev_b32 v12, 3, v12")
    A("ds_write_b64 v12, v[18:19] offset:2048")
    A("s_waitcnt lgkmcnt(0)")
    A("s_barrier")
    A("v_cmp_gt_u32 vcc, 16, v0")
    A("s_and_saveexec_b64 s[26:27], vcc")
    A("s_cbranch_execz k0_end")
    A("v_lshlrev_b32 v12, 3, v0")
    for j in range(16):
        A("ds_read_b64 v[%d:%d], v12 offset:%d" % (32 + 2 * j, 33 + 2 * j, 2048 + j * 128))
    A("s_waitcnt lgkmcnt(0)")
    for j in range(1, 16):
        A("v_add_f32 v32, v32, v%d" % (32 + 2 * j))
        A("v_add_f32 v33, v33, v%d" % (33 + 2 * j))
    A("v_cvt_pk_bf16_f32 v9, v32, v33")
    A("v_lshlrev_b32 v10, 16, v9")
    A("v_and_b32 v11, 0xffff0000, v9")
    A("s_lshl_b32 s3, s2, 7")
    A("v_lshlrev_b32 v12, 3, v0")
    A("v_add_u32 v12, s3, v12")
    A("buffer_store_dwordx2 v[10:11], v12, s[20:23], 0 offen")
    A("s_branch k0_end")
    A.label("k0_stats")
    A.flush_hist()
    A("s_load_dwordx2 s[4:5], s[0:1], 0")
    A("s_load_dwordx2 s[8:9], s[0:1], 88")
    A("s_sub_u32 s3, s2, 96")
    A("s_lshl_b32 s3, s3, 5")
    A("v_lshrrev_b32 v1, 3, v0")
    A("v_add_u32 v1, s3, v1")
    A("v_and_b32 v2, 7, v0")
    A("v_lshlrev_b32 v3, 10, v1")
    A("v_lshlrev_b32 v4, 4, v2")
    A("v_add_u32 v3, v3, v4")
    A("s_waitcnt lgkmcnt(0)")
    srd(A, 12, 4, 2097152)
    srd(A, 20, 8, 16384, WS_ST1)
    for i in range(8):
        A("buffer_load_dwordx4 v[%d:%d], v3, s[12:15], 0 offen offset:%d" % (16 + 4 * i, 19 + 4 * i, i * 128))
    A("v_mov_b32 v5, 0")
    A("s_waitcnt vmcnt(0)")
    for r in range(16, 48):
        A("v_lshlrev_b32 v6, 16, v%d" % r)
        A("v_and_b32 v7, 0xffff0000, v%d" % r)
        A("v_add_f32 v5, v5, v6")
        A("v_add_f32 v5, v5, v7")
    red8(A, 5, 6)
    A("v_mul_f32 v5, 0x3b000000, v5")
    A("v_mov_b32 v8, 0")
    for r in range(16, 48):
        A("v_lshlrev_b32 v6, 16, v%d" % r)
        A("v_and_b32 v7, 0xffff0000, v%d" % r)
        A("v_sub_f32 v6, v6, v5")
        A("v_sub_f32 v7, v7, v5")
        A("v_fmac_f32 v8, v6, v6")
        A("v_fmac_f32 v8, v7, v7")
    red8(A, 8, 6)
    A("v_mul_f32 v8, 0x3b000000, v8")
    A("v_add_f32 v8, 0x3727c5ac, v8")
    A("v_rsq_f32 v6, v8")
    A("v_lshlrev_b32 v3, 3, v1")
    A("v_mov_b32 v4, v5")
    A("v_mov_b32 v5, v6")
    A("buffer_store_dwordx2 v[4:5], v3, s[20:23], 0 offen")
    A("s_branch k0_end")
    A.label("k0_warm")
    A.flush_hist()
    A("s_load_dwordx4 s[4:7], s[0:1], 8")
    A("s_load_dwordx4 s[8:11], s[0:1], 32")
    A("s_load_dwordx2 s[28:29], s[0:1], 48")
    A("s_sub_u32 s3, s2, 160")
    A("s_lshl_b32 s3, s3, 8")
    A("v_add_u32 v1, s3, v0")
    A("v_lshlrev_b32 v1, 6, v1")
    A("s_waitcnt lgkmcnt(0)")
    mats = [(4, 1572864), (6, 524288), (8, 1835008), (10, 1835008), (28, 1835008)]
    r = 8
    for (b, size) in mats:
        srd(A, 12, b, size)
        off = 0
        while off < size:
            A("s_mov_b32 s24, %d" % off)
            A("buffer_load_dword v%d, v1, s[12:15], s24 offen" % r)
            r += 1
            off += 24576 * 64
    A("s_waitcnt vmcnt(0)")
    A.label("k0_end")
    A("s_endpgm")
```

```python
from asmlib import Asm
from common import *
import os
MODE = os.environ.get('K4MODE', '')

NST = 8
PD = 7
STAGE = 16384
LDS = NST * STAGE
VGPR = 128

FR = [16, 40]
ACC = 64
XV = 80
GV = 88
T = 96
VDMA = 112
VHR = 114
VWR = 116
VEO = 118
VST = 119


def gen_gemm(A, name, which):
    KS = 1024 if which == 2 else 3584
    nK = 8 if which == 2 else 28
    gidx = 2 if which == 2 else 5
    A.raw(".p2align 8")
    A.raw(name + ":")
    A.flush_hist()
    A("s_cmp_ge_u32 s2, 256")
    A("s_cbranch_scc1 %s_end" % name)
    A.stamp(0)
    A("s_load_dwordx2 s[8:9], s[0:1], 88")
    if which == 2:
        A("s_load_dwordx2 s[4:5], s[0:1], 16")
        A("s_load_dwordx2 s[6:7], s[0:1], 0")
    else:
        A("s_load_dwordx2 s[4:5], s[0:1], 48")
        A("s_load_dwordx2 s[6:7], s[0:1], 72")
    A("v_lshrrev_b32 v1, 6, v0")
    A("v_readfirstlane_b32 s32, v1")
    A("s_and_b32 s33, s2, 7")
    A("s_lshr_b32 s34, s2, 3")
    A("s_and_b32 s34, s34, 3")
    A("s_lshl_b32 s34, s34, 3")
    A("s_add_u32 s33, s33, s34")
    A("s_lshr_b32 s34, s2, 5")
    if MODE == 'hot':
        A("s_mov_b32 s33, 0")
        A("s_mov_b32 s34, 0")
    A("s_lshl_b32 s35, s33, 6")
    A("v_and_b32 v4, 63, v0")
    A("v_and_b32 v5, 15, v0")
    A("v_bfe_u32 v6, v0, 4, 2")
    A("s_waitcnt lgkmcnt(0)")
    if which == 2:
        srd(A, 16, 8, 2097152, WS_O)
        srd(A, 20, 4, 524288)
        srd(A, 24, 6, 2097152)
        srd(A, 28, 8, 2097152, WS_X1)
        srd(A, 36, 8, 262144, WS_ST2)
    else:
        srd(A, 16, 8, 7340032, WS_HH)
        srd(A, 20, 4, 1835008)
        srd(A, 24, 8, 2097152, WS_X1)
        srd(A, 28, 6, 2097152)
    srd(A, 40, 8, 12288, WS_MOD)
    A("s_cmp_lt_u32 s32, 2")
    A("s_cselect_b32 s12, s16, s20")
    A("s_cselect_b32 s13, s17, s21")
    A("s_cselect_b32 s14, s18, s22")
    A("s_mov_b32 s15, 0x20000")
    A("s_and_b32 s44, s32, 1")
    A("s_lshl_b32 s44, s44, 2")
    A("s_cmp_lt_u32 s32, 2")
    A("s_movk_i32 s45, 128")
    A("s_cselect_b32 s45, s45, 65536")
    A("s_cselect_b32 s46, 0, 8192")
    for j in range(4):
        A("s_add_u32 s47, s44, %d" % j)
        A("s_lshl_b32 s48, s47, 3")
        A("s_add_u32 s49, s48, s35")
        A("s_mul_i32 s49, s49, %d" % KS)
        A("s_lshl_b32 s50, s48, 10")
        A("s_lshl_b32 s51, s34, 7")
        A("s_add_u32 s50, s50, s51")
        A("s_cmp_lt_u32 s32, 2")
        A("s_cselect_b32 s%d, s49, s50" % (52 + j))
        A("s_lshl_b32 s47, s47, 10")
        A("s_add_u32 s%d, s47, s46" % (56 + j))
    A("v_lshrrev_b32 v7, 3, v4")
    A("v_and_b32 v8, 7, v4")
    for par in range(2):
        A("v_lshrrev_b32 v9, 4, v4")
        if par:
            A("v_add_u32 v9, 4, v9")
        A("v_and_b32 v9, 7, v9")
        A("v_xor_b32 v9, v8, v9")
        A("v_lshlrev_b32 v9, 4, v9")
        A("v_mul_u32_u24 v10, %d, v7" % KS)
        A("v_add_u32 v9, v9, v10")
        A("v_and_b32 v10, 2, v7")
        if par:
            A("v_or_b32 v10, 4, v10")
        A("v_xor_b32 v10, v8, v10")
        A("v_lshlrev_b32 v10, 4, v10")
        A("v_lshl_add_u32 v10, v7, 10, v10")
        A("s_cmp_lt_u32 s32, 2")
        A("s_cselect_b64 vcc, -1, 0")
        A("v_cndmask_b32 v%d, v10, v9, vcc" % (VDMA + par))
    A("s_lshr_b32 s47, s32, 1")
    A("s_lshl_b32 s47, s47, 5")
    A("v_add_u32 v7, s47, v5")
    A("v_lshlrev_b32 v7, 7, v7")
    A("v_lshrrev_b32 v8, 1, v5")
    A("v_and_b32 v8, 7, v8")
    A("v_xor_b32 v8, v6, v8")
    A("v_lshl_add_u32 v%d, v8, 4, v7" % VHR)
    A("v_xor_b32 v%d, 64, v%d" % (VHR + 1, VHR))
    A("v_lshrrev_b32 v7, 2, v5")
    A("v_lshl_add_u32 v7, v6, 3, v7")
    A("v_lshlrev_b32 v7, 7, v7")
    A("v_bfe_u32 v8, v5, 3, 1")
    A("v_lshlrev_b32 v8, 1, v8")
    A("v_and_b32 v9, 1, v6")
    A("v_lshl_or_b32 v8, v9, 2, v8")
    A("v_bfe_u32 v9, v5, 1, 1")
    A("s_and_b32 s47, s32, 1")
    A("s_lshl_b32 s47, s47, 2")
    A("v_add_u32 v9, s47, v9")
    A("v_xor_b32 v8, v8, v9")
    A("v_lshl_add_u32 v7, v8, 4, v7")
    A("v_and_b32 v9, 1, v5")
    A("v_lshl_add_u32 v7, v9, 3, v7")
    A("v_add_u32 v%d, 8192, v7" % VWR)
    A("v_xor_b32 v%d, 32, v%d" % (VWR + 1, VWR))
    for q in range(2):
        A("v_add_u32 v%d, 0x10000, v%d" % (120 + q, VHR + q))
        A("v_add_u32 v%d, 0x10000, v%d" % (122 + q, VWR + q))
    A("s_lshr_b32 s47, s32, 1")
    A("s_lshl_b32 s47, s47, 5")
    A("s_add_u32 s47, s47, s35")
    A("v_add_u32 v7, s47, v5")
    A("v_lshlrev_b32 v8, 10, v7")
    A("s_and_b32 s48, s32, 1")
    A("s_lshl_b32 s48, s48, 5")
    A("s_lshl_b32 s49, s34, 6")
    A("s_add_u32 s48, s48, s49")
    A("v_lshl_add_u32 v9, v6, 2, s48")
    A("v_lshl_add_u32 v%d, v9, 1, v8" % VEO)
    A("s_lshl_b32 s48, s34, 1")
    A("s_and_b32 s49, s32, 1")
    A("s_add_u32 s48, s48, s49")
    A("v_lshl_add_u32 v10, v7, 4, s48")
    A("v_lshlrev_b32 v%d, 3, v10" % VST)
    A("v_lshlrev_b32 v10, 2, v9")
    A("s_mov_b32 s47, %d" % (gidx * 2048))
    A.vm("buffer_load_dwordx4 v[%d:%d], v10, s[40:43], s47 offen" % (GV, GV + 3), "ep")
    A.vm("buffer_load_dwordx4 v[%d:%d], v10, s[40:43], s47 offen offset:64" % (GV + 4, GV + 7), "ep")
    for ctl in range(2):
        for rb in range(2):
            r = XV + 2 * (ctl * 2 + rb)
            A("s_mov_b32 s47, %d" % (rb * 16384))
            A.vm("buffer_load_dwordx2 v[%d:%d], v%d, s[24:27], s47 offen offset:%d" % (r, r + 1, VEO, ctl * 32), "ep")

    def dma(kc):
        st = kc % NST
        for j in range(4):
            A("s_add_u32 m0, s%d, %d" % (56 + j, st * STAGE))
            A.vm("buffer_load_dwordx4 v%d, s[12:15], s%d offen lds" % (VDMA + (j & 1), 52 + j), "c%d" % kc)
            A("s_add_u32 s%d, s%d, s45" % (52 + j, 52 + j))

    def reads(kc, ss, fs):
        if MODE == 'nocompute':
            return
        st = kc % NST
        base = FR[fs]
        for rb in range(2):
            A.lg("ds_read_b128 v[%d:%d], v%d offset:%d" % (base + 4 * rb, base + 4 * rb + 3, (VHR + ss) if st < 4 else (120 + ss), (st & 3) * STAGE + rb * 2048), "r%d_%d" % (kc, ss))
        for ctl in range(2):
            for hf in range(2):
                A.lg(
                    "ds_read_b64_tr_b16 v[%d:%d], v%d offset:%d"
                    % (base + 8 + 4 * ctl + 2 * hf, base + 8 + 4 * ctl + 2 * hf + 1, (VWR + ctl) if st < 4 else (122 + ctl), (st & 3) * STAGE + ss * 4096 + hf * 512),
                    "r%d_%d" % (kc, ss),
                )

    def mfmas(kc, ss, fs):
        if MODE == 'nocompute':
            return
        base = FR[fs]
        for ctl in range(2):
            for rb in range(2):
                acc = ACC + (ctl * 2 + rb) * 4
                c = "0" if (kc == 0 and ss == 0) else "v[%d:%d]" % (acc, acc + 3)
                A(
                    "v_mfma_f32_16x16x32_bf16 v[%d:%d], v[%d:%d], v[%d:%d], %s"
                    % (acc, acc + 3, base + 8 + 4 * ctl, base + 8 + 4 * ctl + 3, base + 4 * rb, base + 4 * rb + 3, c)
                )

    for kc in range(min(6, nK)):
        dma(kc)
    A.stamp(1)
    A.wait_vm("c1")
    A("s_barrier")
    reads(0, 0, 0)
    npair = nK // 2
    for p in range(npair):
        if p == 2:
            A.stamp(4)
        if p == 3:
            A.stamp(5)
        a_, b_ = 2 * p, 2 * p + 1
        steps = [(a_, 0), (a_, 1), (b_, 0), (b_, 1)]
        for s_ in range(4):
            if s_ < 3:
                kc2, ss2 = steps[s_ + 1]
                reads(kc2, ss2, (s_ + 1) % 2)
            else:
                if p + 1 < npair:
                    A.wait_vm("c%d" % (2 * p + 3))
                    A("s_barrier")
                    for kn in (2 * p + 6, 2 * p + 7):
                        if kn < nK:
                            dma(kn)
                    reads(2 * p + 2, 0, 0)
            kc1, ss1 = steps[s_]
            A.wait_lg("r%d_%d" % (kc1, ss1))
            mfmas(kc1, ss1, s_ % 2)
    A.stamp(2)
    A.wait_vm()
    for rb in range(2):
        for ctl in range(2):
            acc = ACC + (ctl * 2 + rb) * 4
            xr = XV + 2 * (ctl * 2 + rb)
            tb = T + ctl * 4
            A("v_lshlrev_b32 v%d, 16, v%d" % (tb, xr))
            A("v_and_b32 v%d, 0xffff0000, v%d" % (tb + 1, xr))
            A("v_lshlrev_b32 v%d, 16, v%d" % (tb + 2, xr + 1))
            A("v_and_b32 v%d, 0xffff0000, v%d" % (tb + 3, xr + 1))
            for r in range(4):
                A("v_fma_f32 v%d, v%d, v%d, v%d" % (tb + r, GV + 4 * ctl + r, acc + r, tb + r))
            A("v_cvt_pk_bf16_f32 v%d, v%d, v%d" % (xr, tb, tb + 1))
            A("v_cvt_pk_bf16_f32 v%d, v%d, v%d" % (xr + 1, tb + 2, tb + 3))
            A("s_mov_b32 s47, %d" % (rb * 16384))
            A("buffer_store_dwordx2 v[%d:%d], v%d, s[28:31], s47 offen offset:%d" % (xr, xr + 1, VEO, ctl * 32))
            if which == 2:
                A("v_lshlrev_b32 v%d, 16, v%d" % (tb, xr))
                A("v_and_b32 v%d, 0xffff0000, v%d" % (tb + 1, xr))
                A("v_lshlrev_b32 v%d, 16, v%d" % (tb + 2, xr + 1))
                A("v_and_b32 v%d, 0xffff0000, v%d" % (tb + 3, xr + 1))
        if which == 2:
            S, M2, TMP = T + 8, T + 9, T + 10
            A("v_add_f32 v%d, v%d, v%d" % (S, T, T + 1))
            for j in range(2, 8):
                A("v_add_f32 v%d, v%d, v%d" % (S, S, T + j))
            allreduce4g(A, "v_add_f32", S, TMP)
            A("v_mul_f32 v%d, 0x3d000000, v%d" % (S, S))
            A("v_mov_b32 v%d, 0" % M2)
            for j in range(8):
                A("v_sub_f32 v%d, v%d, v%d" % (TMP, T + j, S))
                A("v_fmac_f32 v%d, v%d, v%d" % (M2, TMP, TMP))
            allreduce4g(A, "v_add_f32", M2, TMP)
            A("v_mov_b32 v%d, v%d" % (T + 12, S))
            A("v_mov_b32 v%d, v%d" % (T + 13, M2))
            A("s_mov_b32 s47, %d" % (rb * 16 * 128))
            A("buffer_store_dwordx2 v[%d:%d], v%d, s[36:39], s47 offen" % (T + 12, T + 13, VST))
    A.stamp(3)
    A.stamp_flush(which, 6, "s32")
    A.label(name + "_end")
    A("s_endpgm")


def gen_k2(A):
    gen_gemm(A, "k2_kernel", 2)


def gen_k4(A):
    gen_gemm(A, "k4_kernel", 4)
```

```python
import struct
from asmlib import Asm
from common import *

MODTAB = 0
HST = 4096
HSTAGE = 20480
WST = HST + 2 * HSTAGE
WSTAGE = 32768
LDS = WST + 3 * WSTAGE
VGPR = 248


def f2h(x):
    return struct.unpack("<I", struct.pack("<f", x))[0]


C1 = f2h(-2.0 * 0.7978845608028654 * 1.4426950408889634)
C2 = f2h(-2.0 * 0.7978845608028654 * 1.4426950408889634 * 0.044715)

XRAW = 16
MT = 32
LT = 48
HF = [60, 68]
WR = 76
NR = 8
ACC = 108
VXOFF = 220
VA = 224
VB = 228
VHW = 232
VMT = 233
VDMA = 234
VWR = 236
VHR = 239
VEO = 240
VWT = 241


def acc(seg, ctl, rb):
    return ACC + ((seg * 7 + ctl) * 2 + rb) * 4


def gen_k3(A):
    A.raw(".p2align 8")
    A.raw("k3_kernel:")
    A.flush_hist()
    A("s_cmp_ge_u32 s2, 256")
    A("s_cbranch_scc1 k3_end")
    A.stamp(0)
    A("s_load_dwordx4 s[4:7], s[0:1], 32")
    A("s_load_dwordx2 s[8:9], s[0:1], 88")
    A("v_lshrrev_b32 v1, 6, v0")
    A("v_readfirstlane_b32 s32, v1")
    A("s_lshr_b32 s33, s2, 4")
    A("s_and_b32 s34, s2, 15")
    A("s_lshl_b32 s35, s33, 7")
    A("v_lshrrev_b32 v2, 3, v0")
    A("v_and_b32 v3, 7, v0")
    A("v_and_b32 v4, 63, v0")
    A("v_and_b32 v5, 15, v0")
    A("v_bfe_u32 v6, v0, 4, 2")
    A("s_waitcnt lgkmcnt(0)")
    srd(A, 12, 8, 2097152, WS_X1)
    srd(A, 16, 4, 1835008)
    srd(A, 40, 6, 1835008)
    srd(A, 20, 8, 262144, WS_ST2)
    srd(A, 24, 8, 12288, WS_MOD)
    srd(A, 28, 8, 7340032, WS_HH)
    A("s_cmp_lt_u32 s32, 2")
    A("s_cselect_b32 s16, s16, s40")
    A("s_cselect_b32 s17, s17, s41")
    for p in range(4):
        A("v_add_u32 v7, s35, v2")
        if p:
            A("v_add_u32 v7, %d, v7" % (32 * p))
        A("v_lshlrev_b32 v%d, 10, v7" % (VXOFF + p))
        A("v_lshl_add_u32 v%d, v3, 4, v%d" % (VXOFF + p, VXOFF + p))
        A("v_lshlrev_b32 v7, 7, v7")
        A("v_lshl_add_u32 v7, v3, 4, v7")
        A.vm("buffer_load_dwordx4 v[%d:%d], v7, s[20:23], 0 offen" % (XRAW + 4 * p, XRAW + 4 * p + 3), "st")
    A("v_lshlrev_b32 v7, 3, v0")
    A("s_movk_i32 s47, 6144")
    A.vm("buffer_load_dwordx2 v[50:51], v7, s[24:27], s47 offen", "mod")
    A.vm("buffer_load_dwordx2 v[52:53], v7, s[24:27], s47 offen offset:2048", "mod")
    A("s_mul_i32 s48, s34, 224")
    for j in range(8):
        A("s_and_b32 s49, s32, 1")
        A("s_lshl_b32 s49, s49, 3")
        A("s_add_u32 s49, s49, %d" % j)
        A("s_mul_i32 s50, s49, 14336")
        A("s_add_u32 s%d, s50, s48" % (56 + j))
        A("s_lshr_b32 s50, s32, 1")
        A("s_lshl_b32 s50, s50, 14")
        A("s_lshl_b32 s49, s49, 10")
        A("s_add_u32 s%d, s50, s49" % (64 + j))
    A("v_lshrrev_b32 v7, 4, v4")
    A("v_and_b32 v8, 15, v4")
    for par in range(2):
        if par:
            A("v_or_b32 v9, 4, v7")
        else:
            A("v_mov_b32 v9, v7")
        A("v_lshlrev_b32 v9, 1, v9")
        A("v_xor_b32 v9, v8, v9")
        A("v_lshlrev_b32 v9, 4, v9")
        A("v_mul_u32_u24 v10, 3584, v7")
        A("v_add_u32 v%d, v9, v10" % (VDMA + par))
    A("v_lshrrev_b32 v7, 2, v5")
    A("v_lshl_add_u32 v8, v6, 3, v7")
    A("v_lshlrev_b32 v8, 8, v8")
    A("v_and_b32 v9, 1, v6")
    A("v_lshl_or_b32 v9, v9, 2, v7")
    A("v_lshlrev_b32 v9, 1, v9")
    A("v_bfe_u32 v10, v5, 1, 1")
    A("v_xor_b32 v9, v9, v10")
    A("v_lshl_add_u32 v8, v9, 4, v8")
    A("v_and_b32 v9, 1, v5")
    A("v_lshl_add_u32 v8, v9, 3, v8")
    for st in range(3):
        A("v_add_u32 v%d, %d, v8" % (VWR + st, WST + st * WSTAGE))
    A("s_lshl_b32 s49, s32, 5")
    A("v_add_u32 v7, s49, v5")
    A("v_mul_u32_u24 v7, 160, v7")
    A("v_lshl_add_u32 v7, v6, 4, v7")
    A("v_add_u32 v%d, %d, v7" % (VHR, HST))
    A("v_mul_u32_u24 v7, 160, v2")
    A("v_lshl_add_u32 v7, v3, 4, v7")
    A("v_add_u32 v%d, %d, v7" % (VHW, HST))
    A("v_lshlrev_b32 v%d, 5, v3" % VMT)
    A("s_add_u32 s49, s49, s35")
    A("v_add_u32 v7, s49, v5")
    A("v_mul_u32_u24 v7, 3584, v7")
    A("v_lshl_add_u32 v7, v6, 3, v7")
    A("v_add_u32 v%d, s48, v7" % VEO)

    def dma_w(kc):
        st = kc % 3
        for j in range(8):
            A("s_add_u32 s49, s%d, %d" % (56 + j, kc * 64 * 3584))
            A("s_add_u32 m0, s%d, %d" % (64 + j, WST + st * WSTAGE))
            A.vm("buffer_load_dwordx4 v%d, s[16:19], s49 offen lds" % (VDMA + ((j >> 1) & 1)), "W%d" % kc)

    def xload(kc):
        for p in range(4):
            A.vm(
                "buffer_load_dwordx4 v[%d:%d], v%d, s[12:15], 0 offen offset:%d" % (XRAW + 4 * p, XRAW + 4 * p + 3, VXOFF + p, kc * 128),
                "x%d" % kc,
            )

    dma_w(0)
    dma_w(1)
    A.wait_vm("mod")
    A("v_add_f32 v52, 1.0, v52")
    A("v_add_f32 v53, 1.0, v53")
    A("v_cvt_pk_bf16_f32 v54, v52, v53")
    A("v_lshlrev_b32 v52, 16, v54")
    A("v_and_b32 v53, 0xffff0000, v54")
    A("v_lshlrev_b32 v7, 3, v0")
    A("ds_write_b64 v7, v[52:53]")
    A("ds_write_b64 v7, v[50:51] offset:2048")
    for p in range(4):
        m0, M0, m1, M1 = XRAW + 4 * p, XRAW + 4 * p + 1, XRAW + 4 * p + 2, XRAW + 4 * p + 3
        A("v_add_f32 v7, v%d, v%d" % (m0, m1))
        red8(A, 7, 8)
        A("v_mul_f32 v7, 0x3d800000, v7")
        A("v_sub_f32 v8, v%d, v7" % m0)
        A("v_sub_f32 v9, v%d, v7" % m1)
        A("v_mul_f32 v8, v8, v8")
        A("v_fmac_f32 v8, v9, v9")
        A("v_add_f32 v9, v%d, v%d" % (M0, M1))
        A("v_fmac_f32 v9, 0x42000000, v8")
        red8(A, 9, 8)
        A("v_mul_f32 v9, 0x3b000000, v9")
        A("v_add_f32 v9, 0x3727c5ac, v9")
        A("v_rsq_f32 v%d, v9" % (VA + p))
        A("v_mul_f32 v8, v7, v%d" % (VA + p))
        A("v_sub_f32 v%d, 0, v8" % (VB + p))
    xload(0)
    A("s_waitcnt lgkmcnt(0)")
    A("s_barrier")

    def ln_chunk(kc):
        sth = kc % 2
        A.lg("ds_read_b128 v[%d:%d], v%d offset:%d" % (MT, MT + 3, VMT, kc * 256), "mt")
        A.lg("ds_read_b128 v[%d:%d], v%d offset:%d" % (MT + 4, MT + 7, VMT, kc * 256 + 16), "mt")
        A.lg("ds_read_b128 v[%d:%d], v%d offset:%d" % (MT + 8, MT + 11, VMT, 2048 + kc * 256), "mt")
        A.lg("ds_read_b128 v[%d:%d], v%d offset:%d" % (MT + 12, MT + 15, VMT, 2048 + kc * 256 + 16), "mt")
        A.wait_vm("x%d" % kc)
        A.wait_lg("mt")
        for p in range(4):
            for d in range(4):
                r = XRAW + 4 * p + d
                A("v_lshlrev_b32 v%d, 16, v%d" % (LT + 2 * d, r))
                A("v_and_b32 v%d, 0xffff0000, v%d" % (LT + 2 * d + 1, r))
            for e in range(8):
                A("v_fma_f32 v%d, v%d, v%d, v%d" % (LT + e, LT + e, VA + p, VB + p))
            for e in range(8):
                A("v_fma_f32 v%d, v%d, v%d, v%d" % (LT + e, LT + e, MT + e, MT + 8 + e))
            for d in range(4):
                A("v_cvt_pk_bf16_f32 v%d, v%d, v%d" % (56 + d, LT + 2 * d, LT + 2 * d + 1))
            A.lg("ds_write_b128 v%d, v[56:59] offset:%d" % (VHW, sth * HSTAGE + p * 5120), "hw")

    def ln_ops(kc):
        sth = kc % 2
        ops = []
        for j, off in enumerate((kc * 256, kc * 256 + 16, 2048 + kc * 256, 2048 + kc * 256 + 16)):
            ops.append(lambda j=j, off=off: A.lg("ds_read_b128 v[%d:%d], v%d offset:%d" % (MT + 4 * j, MT + 4 * j + 3, VMT, off), "mt"))
        ops.append(lambda: (A.wait_vm("x%d" % kc), A.wait_lg("mt")))
        for p in range(4):
            for d in range(4):
                r = XRAW + 4 * p + d
                ops.append(lambda r=r, d=d: A("v_lshlrev_b32 v%d, 16, v%d" % (LT + 2 * d, r)))
                ops.append(lambda r=r, d=d: A("v_and_b32 v%d, 0xffff0000, v%d" % (LT + 2 * d + 1, r)))
            for e in range(8):
                ops.append(lambda e=e, p=p: A("v_fma_f32 v%d, v%d, v%d, v%d" % (LT + e, LT + e, VA + p, VB + p)))
            for e in range(8):
                ops.append(lambda e=e: A("v_fma_f32 v%d, v%d, v%d, v%d" % (LT + e, LT + e, MT + e, MT + 8 + e)))
            for d in range(4):
                ops.append(lambda d=d: A("v_cvt_pk_bf16_f32 v%d, v%d, v%d" % (56 + d, LT + 2 * d, LT + 2 * d + 1)))
            ops.append(lambda p=p: A.lg("ds_write_b128 v%d, v[56:59] offset:%d" % (VHW, sth * HSTAGE + p * 5120), "hw"))
        return ops

    ln_chunk(0)
    xload(1)
    A.wait_vm("W0")
    A.wait_lg()
    A("s_barrier")

    D = 4
    A.stamp(1)
    for kc in range(8):
        if kc == 3:
            A.stamp(4)
        if kc == 4:
            A.stamp(5)
        stw = kc % 3
        sth = kc % 2
        if kc + 2 < 8:
            dma_w(kc + 2)
        items = [(ss, seg, ctl) for ss in range(2) for ctl in range(7) for seg in range(2)]

        def issue(n):
            ss, seg, ctl = items[n]
            slot = n % NR
            r = WR + 4 * slot
            if seg == 0:
                A("v_xor_b32 v%d, %d, v%d" % (VWT + (ctl % 7), ctl * 32, VWR + stw))
            ad = VWT + (ctl % 7)
            for hf in range(2):
                A.lg(
                    "ds_read_b64_tr_b16 v[%d:%d], v%d offset:%d" % (r + 2 * hf, r + 2 * hf + 1, ad, seg * 16384 + ss * 8192 + hf * 1024),
                    "i%d" % n,
                )

        def hread(ss):
            for rb in range(2):
                A.lg(
                    "ds_read_b128 v[%d:%d], v%d offset:%d" % (HF[ss] + 4 * rb, HF[ss] + 4 * rb + 3, VHR, sth * HSTAGE + rb * 2560 + ss * 64),
                    "h%d" % ss,
                )

        lq = ln_ops(kc + 1) if kc + 1 < 8 else []
        hread(0)
        for n in range(D):
            issue(n)
        for n in range(len(items)):
            ss, seg, ctl = items[n]
            if n == 6:
                hread(1)
            A.wait_lg("i%d" % n)
            if n == 0:
                pass
            slot = n % NR
            r = WR + 4 * slot
            for rb in range(2):
                a = acc(seg, ctl, rb)
                c = "0" if (kc == 0 and ss == 0) else "v[%d:%d]" % (a, a + 3)
                A(
                    "v_mfma_f32_16x16x32_bf16 v[%d:%d], v[%d:%d], v[%d:%d], %s"
                    % (a, a + 3, r, r + 3, HF[ss] + 4 * rb, HF[ss] + 4 * rb + 3, c)
                )
            if n + D < len(items):
                issue(n + D)
            if n >= 2:
                for _ in range(6):
                    if lq:
                        lq.pop(0)()
        if kc + 1 < 8:
            while lq:
                lq.pop(0)()
            if kc + 2 < 8:
                xload(kc + 2)
            A.wait_vm("W%d" % (kc + 1))
            A.wait_lg()
            A("s_barrier")

    A.stamp(2)
    A("s_mov_b32 s50, 0x%x" % C1)
    A("s_mov_b32 s51, 0x%x" % C2)
    TT = 16
    for rb in range(2):
        for ctl in range(7):
            ag = acc(0, ctl, rb)
            au = acc(1, ctl, rb)
            t = TT + (ctl % 2) * 8
            for r in range(4):
                A("v_mul_f32 v%d, v%d, v%d" % (t + r, ag + r, ag + r))
            for r in range(4):
                A("v_fma_f32 v%d, v%d, s51, s50" % (t + r, t + r) if False else "v_mov_b32 v%d, s50" % (t + 4 + r))
            for r in range(4):
                A("v_fmac_f32 v%d, s51, v%d" % (t + 4 + r, t + r))
            for r in range(4):
                A("v_mul_f32 v%d, v%d, v%d" % (t + r, ag + r, t + 4 + r))
            for r in range(4):
                A("v_exp_f32 v%d, v%d" % (t + r, t + r))
            for r in range(4):
                A("v_add_f32 v%d, 1.0, v%d" % (t + r, t + r))
            for r in range(4):
                A("v_rcp_f32 v%d, v%d" % (t + r, t + r))
            for r in range(4):
                A("v_mul_f32 v%d, v%d, v%d" % (t + r, t + r, ag + r))
            for r in range(4):
                A("v_mul_f32 v%d, v%d, v%d" % (t + r, t + r, au + r))
            A("v_cvt_pk_bf16_f32 v%d, v%d, v%d" % (t + 4, t, t + 1))
            A("v_cvt_pk_bf16_f32 v%d, v%d, v%d" % (t + 5, t + 2, t + 3))
            A("s_mov_b32 s49, %d" % (rb * 16 * 3584))
            A("buffer_store_dwordx2 v[%d:%d], v%d, s[28:31], s49 offen offset:%d" % (t + 4, t + 5, VEO, ctl * 32))
    A.stamp(3)
    A.stamp_flush(3, 6, "s32")
    A.label("k3_end")
    A("s_endpgm")
```
